```python
import torch

def _softmax(x, axis=-1):
    return torch.softmax(x, dim=axis)
def _gelu(x):
    return torch.nn.functional.gelu(x, approximate="tanh")
def _silu(x):
    return torch.nn.functional.silu(x)
def _sigmoid(x):
    return torch.sigmoid(x)
def _layernorm(x, axis=-1, eps=1e-5):
    m = x.mean(dim=axis, keepdim=True)
    v = x.var(dim=axis, keepdim=True, unbiased=False)
    return (x - m) / torch.sqrt(v + eps)
def _scatter_add(tgt, idx, src, axis=0):
    return tgt.clone().index_add_(axis, idx, src)
def _segment_sum(src, seg, n):
    out = torch.zeros((n,) + src.shape[1:], dtype=src.dtype)
    return out.index_add_(0, seg, src)
def _pad(x, pw):
    flat = tuple(v for pair in reversed(pw) for v in pair)
    return torch.nn.functional.pad(x, flat)

kernel_name = 'gated_mix__sliding_block__dense_activation_relu__prompt'

def setup_inputs():

    _w = (lambda a: (lambda t: t.to(torch.bfloat16) if t.is_floating_point() else t)(torch.as_tensor(a)))
    def _A_setup():
        B, S, D = 1, 2048, 448
        return {
            "x": _w((lambda *s: torch.randn(*s, dtype=torch.bfloat16) * 0.05)(B, S, D)),
            "wqkv": _w((lambda *s: torch.randn(*s, dtype=torch.bfloat16) * 1.6)(D, 3 * D)),
            "wo": _w((lambda *s: torch.randn(*s, dtype=torch.bfloat16) * 0.05)(D, D)),
        }
    _A_in = _A_setup()

    def _B_setup():
        B, S, D, Dff = 1, 2048, 448, 1792
        return {
            "x": _w((lambda *s: torch.randn(*s, dtype=torch.bfloat16) * 0.05)(B, S, D)),
            "w1": _w((lambda *s: torch.randn(*s, dtype=torch.bfloat16) * 0.2)(D, Dff)),
            "w2": _w((lambda *s: torch.randn(*s, dtype=torch.bfloat16) * 0.2)(Dff, D)),
        }
    _B_in = _B_setup()

    return {
        "A_x": _A_in["x"],
        "A_wqkv": _A_in["wqkv"],
        "A_wo": _A_in["wo"],
        "B_x": _B_in["x"],
        "B_w1": _B_in["w1"],
        "B_w2": _B_in["w2"],
        "gate_w": _w((lambda *s: torch.randn(*s, dtype=torch.bfloat16) * 0.05)(448) * 16.0),
    }

def reference(A_x, A_wqkv, A_wo, B_x, B_w1, B_w2, gate_w):
    def _A_ref(x, wqkv, wo):
        B, S, D = x.shape
        H = 16; Dh = D // H; W = 256
        qkv = (lambda x, *d: x.permute(*d))((x @ wqkv).reshape(B, S, 3, H, Dh), 2, 0, 3, 1, 4)
        q, k, v = qkv[0], qkv[1], qkv[2]
        scores = torch.einsum("bhqd,bhkd->bhqk", q, k) * (Dh ** -0.5)
        idx = torch.arange(S)
        mask = (idx[:, None] - idx[None, :] >= 0) & (idx[:, None] - idx[None, :] < W)
        scores = torch.where(mask[None, None], scores, -1e9)
        p = _softmax(scores, axis=-1)
        o = torch.einsum("bhqk,bhkd->bhqd", p, v)
        return (lambda x, *d: x.permute(*d))(o, 0, 2, 1, 3).reshape(B, S, D) @ wo

    def _B_ref(x, w1, w2):
        h = torch.einsum("bsd,df->bsf", x, w1)
        zero = torch.zeros_like(h)
        h = torch.maximum(h, zero)
        return torch.einsum("bsf,fd->bsd", h, w2)

    x = A_x
    g = _sigmoid((x * gate_w).sum(-1, keepdims=True))
    a = _A_ref(x, A_wqkv, A_wo)
    b = _B_ref(x, B_w1, B_w2)
    return g * a + (1 - g) * b
```

```python
import re

REG_RE = re.compile(r'(?<![\w.])([vas])(?:(\d+)|\[(\d+):(\d+)\])(?![\w])')

def regs_of(tok):
    out = []
    for m in REG_RE.finditer(tok):
        k = m.group(1)
        if m.group(2) is not None:
            out.append((k, int(m.group(2))))
        else:
            out += [(k, i) for i in range(int(m.group(3)), int(m.group(4)) + 1)]
    if re.search(r'\bvcc\b', tok): out.append(('s', 'vcc'))
    if re.search(r'\bexec(_lo|_hi)?\b', tok): out.append(('s', 'exec'))
    if re.search(r'\bm0\b', tok): out.append(('s', 'm0'))
    return out

def split_ops(s):
    ops, depth, cur = [], 0, ''
    for ch in s:
        if ch == '[': depth += 1
        if ch == ']': depth -= 1
        if ch == ',' and depth == 0:
            ops.append(cur.strip()); cur = ''
        else:
            cur += ch
    if cur.strip(): ops.append(cur.strip())
    return ops

TRANS = ('v_exp_f32', 'v_log_f32', 'v_rcp_f32', 'v_rsq_f32', 'v_sqrt_f32', 'v_sin_f32', 'v_cos_f32')

class Ins:
    __slots__ = ('text', 'mn', 'kind', 'wr', 'rd', 'srcc', 'passes', 'states', 'storedata', 'lds')

def parse(text):
    t = text.split(';')[0].strip()
    mn, _, rest = t.partition(' ')
    ops = split_ops(rest)
    I = Ins(); I.text = text; I.mn = mn; I.wr = []; I.rd = []; I.srcc = []; I.passes = 0; I.states = 1
    I.storedata = []; I.lds = False
    if mn.startswith('v_mfma'):
        I.kind = 'mfma'; I.passes = 8 if '32x32x16' in mn else 4
        I.wr = regs_of(ops[0]); I.rd = regs_of(ops[1]) + regs_of(ops[2]); I.srcc = regs_of(ops[3])
    elif mn.startswith('v_'):
        I.kind = 'trans' if mn.replace('_e32', '').replace('_e64', '') in TRANS else 'valu'
        if mn.startswith('v_permlane') and 'swap' in mn:
            I.kind = 'permlane'
            I.wr = regs_of(ops[0]) + regs_of(ops[1]); I.rd = list(I.wr)
        elif mn.startswith('v_cmp'):
            I.wr = regs_of(ops[0]); I.rd = sum((regs_of(o) for o in ops[1:]), [])
        elif mn.startswith('v_readfirstlane') or mn.startswith('v_readlane'):
            I.kind = 'readlane'
            I.wr = regs_of(ops[0]); I.rd = sum((regs_of(o) for o in ops[1:]), [])
        elif mn.startswith('v_add_co') or mn.startswith('v_addc_co') or mn.startswith('v_sub_co'):
            I.wr = regs_of(ops[0]) + regs_of(ops[1]); I.rd = sum((regs_of(o) for o in ops[2:]), [])
        else:
            I.wr = regs_of(ops[0]); I.rd = sum((regs_of(o) for o in ops[1:]), [])
            if mn.startswith('v_fmac'): I.rd += I.wr
    elif mn.startswith('ds_read'):
        I.kind = 'ds'; I.wr = regs_of(ops[0]); I.rd = regs_of(ops[1])
    elif mn.startswith('ds_write'):
        I.kind = 'ds'; I.rd = sum((regs_of(o) for o in ops), [])
    elif mn.startswith('buffer_load') or mn.startswith('global_load'):
        I.kind = 'vmem'
        if re.search(r'\blds\b', rest):
            I.lds = True
            I.rd = sum((regs_of(o) for o in ops), []) + [('s', 'm0')]
        else:
            I.wr = regs_of(ops[0]); I.rd = sum((regs_of(o) for o in ops[1:]), [])
    elif mn.startswith('buffer_store') or mn.startswith('global_store'):
        I.kind = 'vmem'; I.rd = sum((regs_of(o) for o in ops), [])
        data = ops[0] if mn.startswith('buffer_store') else ops[1]
        if mn.endswith('x4') or mn.endswith('x3'): I.storedata = regs_of(data)
    elif mn == 's_nop':
        I.kind = 'nop'; I.states = int(ops[0], 0) + 1
    elif mn.startswith('s_'):
        I.kind = 'salu'
        if mn.startswith(('s_cmp', 's_cbranch', 's_branch', 's_waitcnt', 's_barrier', 's_sleep', 's_endpgm', 's_setprio')):
            I.rd = sum((regs_of(o) for o in ops), [])
        else:
            I.wr = regs_of(ops[0]) if ops else []
            I.rd = sum((regs_of(o) for o in ops[1:]), [])
    else:
        raise ValueError('unknown instr ' + text)
    return I

VALUISH = ('valu', 'trans', 'permlane', 'readlane')

def need(p, c):
    n = 0
    pw = set(p.wr);
    crd = set(c.rd); cw = set(c.wr); cc = set(c.srcc)
    vw = {r for r in pw if r[0] in 'va'}
    sw = {r for r in pw if r[0] == 's'}
    if p.kind in VALUISH:
        if c.kind == 'mfma' and vw & (crd | cc): n = max(n, 2)
        if c.kind == 'permlane' and vw & crd: n = max(n, 2)
        if c.kind == 'readlane' and vw & crd: n = max(n, 1)
        if p.kind == 'trans' and c.kind in VALUISH + ('mfma',) and c.kind != 'trans' and vw & crd: n = max(n, 1)
        if p.kind == 'trans' and c.kind == 'trans' and vw & crd: n = max(n, 1)
        if sw:
            if c.kind in VALUISH and sw & crd: n = max(n, 4 if c.kind == 'readlane' else 2)
            if c.kind == 'vmem' and sw & crd: n = max(n, 5)
            if c.kind == 'salu' and sw & crd: n = max(n, 2)
    if p.kind == 'mfma':
        big = {4: 8, 8: 12}[p.passes]
        if c.kind == 'mfma':
            if vw & crd: n = max(n, big)
            if vw & cc:
                if not (p.wr == c.srcc and p.passes == c.passes): n = max(n, {4: 6, 8: 10}[p.passes])
            elif vw & cw: n = max(n, big)
        elif c.kind in VALUISH + ('ds', 'vmem'):
            if vw & (crd | cw): n = max(n, big)
        if c.kind in VALUISH and set(p.srcc) & cw: n = max(n, {4: 3, 8: 7}[p.passes])
    if p.kind == 'salu' and ('s', 'm0') in pw and c.kind == 'vmem' and c.lds: n = max(n, 1)
    if p.storedata and set(p.storedata) & cw and c.kind != 'salu': n = max(n, 2)
    return n

class Emitter:
    def __init__(self):
        self.lines = []
        self.hist = []
        self.vm = []
        self.lgkm = []
        self.smem = False
        self.nins = 0
    def raw(self, s):
        self.lines.append(s)
    def comment(self, s):
        self.lines.append('    ; ' + s)
    def label(self, name):
        self.lines.append(name + ':')
    def I(self, text, tag=None):
        c = parse(text)
        dist = 0; pad = 0
        for p in reversed(self.hist):
            if dist >= 20: break
            n = need(p, c)
            if n - dist > pad: pad = n - dist
            dist += p.states
        while pad > 0:
            k = min(pad, 16)
            nop = parse(f's_nop {k-1}')
            self.lines.append(f'    s_nop {k-1}'); self.hist.append(nop); pad -= k; self.nins += 1
        self.lines.append('    ' + text)
        self.hist.append(c); self.nins += 1
        if len(self.hist) > 64: self.hist = self.hist[-40:]
        if c.kind == 'vmem': self.vm.append(tag)
        elif c.kind == 'ds': self.lgkm.append(tag)
        elif c.mn.startswith(('s_load', 's_memtime', 's_memrealtime')): self.smem = True
        return c
    def _cnt(self, q, tags):
        idx = -1
        for i, t in enumerate(q):
            if t in tags: idx = i
        if idx < 0: return None
        return len(q) - 1 - idx
    def wait(self, vm=None, lgkm=None):
        parts = []
        if vm is not None:
            if vm == 'all': n = 0 if self.vm else None
            else:
                n = self._cnt(self.vm, vm if isinstance(vm, (list, tuple, set)) else [vm])
            if n is not None:
                if n <= 63: parts.append(f'vmcnt({n})')
                self.vm = self.vm[len(self.vm) - n:] if n else []
        if lgkm is not None:
            if lgkm == 'all' or self.smem:
                n = 0 if (self.lgkm or self.smem) else None
                self.smem = False
            else:
                n = self._cnt(self.lgkm, lgkm if isinstance(lgkm, (list, tuple, set)) else [lgkm])
            if n is not None:
                assert n <= 15 or True
                parts.append(f'lgkmcnt({min(n,15)})')
                n = min(n, 15)
                self.lgkm = self.lgkm[len(self.lgkm) - n:] if n else []
        if parts: self.I('s_waitcnt ' + ' '.join(parts))
    def drain(self):
        self.I('s_waitcnt vmcnt(0) lgkmcnt(0)')
        self.vm = []; self.lgkm = []; self.smem = False
    def fence_hazards(self):
        self.I('s_nop 15')
    def snapshot(self):
        return (list(self.vm), list(self.lgkm), self.smem, list(self.hist))
    def restore(self, s):
        self.vm, self.lgkm, self.smem, self.hist = list(s[0]), list(s[1]), s[2], list(s[3])
    def text(self):
        return '\n'.join(self.lines) + '\n'

class Alloc:
    def __init__(self, n, start=0):
        self.free = [True] * n
        for i in range(start): self.free[i] = False
        self.hi = 0
    def get(self, n=1, align=1):
        i = 0
        while i + n <= len(self.free):
            if i % align == 0 and all(self.free[i:i+n]):
                for k in range(i, i+n): self.free[k] = False
                self.hi = max(self.hi, i + n)
                return i
            i += 1
        raise RuntimeError('out of regs')
    def put(self, i, n=1):
        for k in range(i, i+n):
            assert not self.free[k]
            self.free[k] = True
```

```python
import sys, math, struct
from asmlib import Emitter, Alloc

NAME = 'gated_mix__sliding_block__dense_activation_relu__prompt'
WS_TAG = 0
WS_FQ = 0x1000
WS_FH = 0x2000
WS_FO = 0x3000
WS_G = 0x4000
WS_STAMP = 0x10000
WS_QKV = 0x100000
WS_H = 0x700000
WS_O = 0xE00000
WS_SIZE = 0x1000000
WRING = 0
XRING = 65536
W3B = 65536
QKVREG = 106496
KREG = QKVREG
VREG = QKVREG + 24576
QREG = QKVREG + 49152
RED = QKVREG
LDS_BYTES = 163840
OOB = 0x7F000000
SPIN_MAX = 20000

def f32bits(x): return struct.unpack('<I', struct.pack('<f', x))[0]

def generate(stamps=False):
    E = Emitter(); I = E.I
    V = Alloc(256, 1)
    S = Alloc(102, 3)
    def vr(i, n): return f'v[{i}:{i+n-1}]'
    def ar(i, n): return f'a[{i}:{i+n-1}]'
    def sr(i, n): return f's[{i}:{i+n-1}]'
    uid = [0]
    def L(p):
        uid[0] += 1; return f'L_{p}_{uid[0]}'

    sX, sWQ, sW1, sW2, sWO, sWS, sOUT, sDBG = [S.get(4, 4) for _ in range(8)]
    sGT = sWQ
    sMASK = S.get(32, 4)
    s_w, s_i, s_c, s_mt, s_ns, s_kap, s_T, s_t0, s_t1, s_t2, s_t3, s_cnt, s_xb, s_wb, s_m0x, s_m0w = [S.get() for _ in range(16)]
    sP = S.get(2, 2); sNeed = S.get(2, 2); sSC = S.get(2, 2); sTM = 0
    sNeedQ = S.get(2, 2); sNeedH = sNeed; sNeedO = S.get(2, 2)
    s_w3a, s_w3b, s_hb0, s_hb1, s_w2b, s_wob = [S.get() for _ in range(6)]

    vStamp = V.get()
    def stamp(k):
        if not stamps: return
        I(f's_memrealtime {sr(sTM,2)}')
        E.wait(lgkm='all')
        I(f'v_writelane_b32 v{vStamp}, s{sTM}, {k}')

    E.raw(f'{NAME}_kernel:')
    I('s_cmp_ge_u32 s2, 256')
    I('s_cbranch_scc1 L_end')
    kp = sMASK
    I(f's_load_dwordx16 {sr(kp,16)}, s[0:1], 0')
    I(f's_load_dwordx4 {sr(kp+16,4)}, s[0:1], 64')
    vT0, vT1, vT2, vT3 = [V.get() for _ in range(4)]
    vLane, vHi, vL31 = V.get(), V.get(), V.get()
    I(f's_getpc_b64 {sr(sP,2)}')
    I(f'v_lshlrev_b32 v{vT0}, 7, v0')
    I(f'global_load_dword v{vT1}, v{vT0}, {sr(sP,2)}', tag='code')
    if stamps: I(f'v_mov_b32 v{vStamp}, 0')
    I(f'v_and_b32 v{vLane}, 63, v0')
    I(f'v_lshrrev_b32 v{vT0}, 6, v0')
    I(f'v_readfirstlane_b32 s{s_w}, v{vT0}')
    I(f'v_lshrrev_b32 v{vHi}, 5, v{vLane}')
    I(f'v_and_b32 v{vL31}, 31, v{vLane}')
    I(f's_and_b32 s{s_t0}, s2, 7')
    I(f's_lshr_b32 s{s_t1}, s2, 3')
    I(f's_and_b32 s{s_i}, s{s_t0}, 1')
    I(f's_lshl_b32 s{s_i}, s{s_i}, 3')
    I(f's_and_b32 s{s_t2}, s{s_t1}, 7')
    I(f's_add_u32 s{s_i}, s{s_i}, s{s_t2}')
    I(f's_lshr_b32 s{s_c}, s{s_t0}, 1')
    I(f's_lshl_b32 s{s_c}, s{s_c}, 2')
    I(f's_lshr_b32 s{s_t3}, s{s_t1}, 3')
    I(f's_add_u32 s{s_c}, s{s_c}, s{s_t3}')
    I(f's_lshl_b32 s{s_mt}, s{s_t0}, 2')
    I(f's_and_b32 s{s_ns}, s{s_t1}, 3')
    I(f's_add_u32 s{s_mt}, s{s_mt}, s{s_ns}')
    I(f's_lshr_b32 s{s_ns}, s{s_t1}, 2')
    I(f's_lshl_b32 s{s_t3}, s{s_t3}, 1')
    I(f's_add_u32 s{s_kap}, s{s_t2}, s{s_t3}')
    I(f's_sub_u32 s{s_t3}, s{s_kap}, 7')
    I(f's_cmp_ge_u32 s{s_kap}, 7')
    I(f's_cselect_b32 s{s_kap}, s{s_t3}, s{s_kap}')
    I(f's_lshl_b32 s{s_T}, s{s_i}, 2')
    I(f's_add_u32 s{s_T}, s{s_T}, s{s_w}')
    vXo = V.get(4); vWq = V.get(4); vW1 = V.get(4)
    I(f'v_lshrrev_b32 v{vT0}, 3, v{vLane}')
    I(f'v_mul_u32_u24 v{vT2}, 896, v{vT0}')
    I(f'v_lshrrev_b32 v{vT0}, 4, v{vLane}')
    I(f'v_and_b32 v{vT3}, 7, v{vLane}')
    I(f'v_xor_b32 v{vT3}, v{vT3}, v{vT0}')
    I(f'v_lshl_add_u32 v{vXo}, v{vT3}, 4, v{vT2}')
    I(f'v_add_u32 v{vXo+2}, {2*(7168-1024)}, v{vXo}')
    I(f'v_xor_b32 v{vT3}, 4, v{vT3}')
    I(f'v_lshl_add_u32 v{vXo+1}, v{vT3}, 4, v{vT2}')
    I(f'v_add_u32 v{vXo+3}, {3*(7168-1024)}, v{vXo+1}')
    I(f'v_add_u32 v{vXo+1}, {7168-1024}, v{vXo+1}')
    I(f'v_bfe_u32 v{vT2}, v{vLane}, 2, 2')
    I(f'v_xor_b32 v{vT2}, v{vT2}, v{vT0}')
    I(f'v_lshlrev_b32 v{vT2}, 6, v{vT2}')
    I(f'v_and_b32 v{vT3}, 3, v{vLane}')
    I(f'v_lshl_add_u32 v{vT2}, v{vT3}, 4, v{vT2}')
    for base, RS in ((vWq, 2688), (vW1, 3584)):
        I(f'v_mul_u32_u24 v{vT3}, {RS}, v{vT0}')
        I(f'v_add_u32 v{base}, v{vT3}, v{vT2}')
        for q in range(1, 4):
            I(f'v_add_u32 v{base+q}, {q*(4*RS-1024)}, v{base}')
    E.wait(lgkm='all')
    def srd(d, p, nbytes):
        I(f's_mov_b32 s{d}, s{p}')
        I(f's_and_b32 s{d+1}, s{p+1}, 0xffff')
        I(f's_mov_b32 s{d+2}, {nbytes}')
        I(f's_mov_b32 s{d+3}, 0x00020000')
    srd(sX, kp+0, 2048*896)
    srd(sWQ, kp+2, 448*2688)
    I(f's_mul_i32 s{s_xb}, s{s_T}, {32*896}')
    I(f's_lshl_b32 s{s_m0w}, s{s_w}, 12')
    I(f's_add_u32 s{s_m0x}, s{s_m0w}, {XRING}')
    I(f's_cmp_ge_u32 s{s_c}, 14')
    I(f's_cbranch_scc1 L_aux')
    snap_aux = E.snapshot()

    def rest_srds(aux=False):
        srd(sWO, kp+4, 448*896)
        srd(sW1, kp+8, 448*3584)
        srd(sW2, kp+10, 1792*896)
        if aux: srd(sGT, kp+12, 896)
        srd(sOUT, kp+14, 2048*896)
        srd(sDBG, kp+16, 256)
        srd(sWS, kp+18, WS_SIZE)

    vTag = V.get()
    def make_tag():
        lab = L('notag')
        I(f's_or_b32 s{s_t0}, s2, s{s_w}')
        I(f's_cmp_lg_u32 s{s_t0}, 0')
        I(f's_cbranch_scc1 {lab}')
        sn = E.snapshot()
        I(f'v_mov_b32 v{vT0}, 0')
        I(f'buffer_load_dword v{vT1}, v{vT0}, {sr(sWS,4)}, 0 offen sc1', tag='oldtag')
        I('s_waitcnt vmcnt(0)')
        I(f'v_add_u32 v{vT1}, 1, v{vT1}')
        I(f'v_or_b32 v{vT1}, 0x80000000, v{vT1}')
        I('s_mov_b64 exec, 1')
        I(f'buffer_store_dword v{vT1}, v{vT0}, {sr(sDBG,4)}, 0 offen sc1')
        I(f'buffer_store_dword v{vT1}, v{vT0}, {sr(sWS,4)}, 0 offen sc1')
        I('s_mov_b64 exec, -1')
        I('s_waitcnt vmcnt(0)')
        E.restore(sn)
        E.label(lab)

    def get_tag():
        lab = L('tag'); done = L('tagok')
        I(f's_mov_b32 s{s_cnt}, 0')
        I(f'v_mov_b32 v{vT0}, 0')
        E.label(lab)
        I(f'buffer_load_dword v{vTag}, v{vT0}, {sr(sDBG,4)}, 0 offen sc1', tag='tagld')
        E.wait(vm='all')
        I(f'v_readfirstlane_b32 s{s_t0}, v{vTag}')
        I(f's_add_u32 s{s_cnt}, s{s_cnt}, 1')
        I(f's_cmp_lg_u32 s{s_t0}, 0')
        I(f's_cbranch_scc1 {done}')
        I(f's_cmp_lt_u32 s{s_cnt}, {SPIN_MAX}')
        I(f's_cbranch_scc1 {lab}')
        E.label(done)

    def set_flag(base, col_sgpr_or_imm):
        I(f's_lshl_b32 s{s_t0}, s{s_T}, 6')
        if isinstance(col_sgpr_or_imm, int):
            I(f's_add_u32 s{s_t0}, s{s_t0}, {base + 4*col_sgpr_or_imm}')
        else:
            I(f's_lshl_b32 s{s_t1}, {col_sgpr_or_imm}, 2')
            I(f's_add_u32 s{s_t0}, s{s_t0}, s{s_t1}')
            I(f's_add_u32 s{s_t0}, s{s_t0}, {base}')
        I(f'v_mov_b32 v{vT0}, 0')
        I('s_mov_b64 exec, 1')
        I(f'buffer_store_dword v{vTag}, v{vT0}, {sr(sWS,4)}, s{s_t0} offen sc1', tag='flagst')
        I('s_mov_b64 exec, -1')

    def poll(vaddr, need):
        lab = L('poll'); done = L('pollok')
        I(f's_mov_b32 s{s_cnt}, 0')
        E.label(lab)
        I(f'buffer_load_dword v{vT1}, v{vaddr}, {sr(sWS,4)}, 0 offen sc1', tag='pollld')
        E.wait(vm='all')
        I(f'v_cmp_ne_u32 vcc, v{vT1}, v{vTag}')
        I(f's_add_u32 s{s_cnt}, s{s_cnt}, 1')
        I(f's_and_b64 {sr(sP,2)}, vcc, {sr(need,2)}')
        I(f's_cbranch_scc0 {done}')
        I(f's_sleep 2')
        I(f's_cmp_lt_u32 s{s_cnt}, {SPIN_MAX}')
        I(f's_cbranch_scc1 {lab}')
        E.label(done)

    def adv_kap():
        I(f's_add_u32 s{s_kap}, s{s_kap}, 1')
        I(f's_cmp_eq_u32 s{s_kap}, 7')
        I(f's_cselect_b32 s{s_kap}, 0, s{s_kap}')

    def issue_x(n, slot_addr_imm):
        I(f's_add_u32 m0, s{s_m0x}, {slot_addr_imm}')
        I(f's_lshl_b32 s{s_t0}, s{s_kap}, 7')
        I(f's_add_u32 s{s_t0}, s{s_t0}, s{s_xb}')
        for q in range(4):
            I(f'buffer_load_dwordx4 v{vXo+q}, {sr(sX,4)}, s{s_t0} offen offset:{q*1024} lds', tag=f'x{n}')

    def issue_w(n):
        RS, srdw, vo = (2688, sWQ, vWq) if n < 7 else (3584, sW1, vW1)
        I(f's_add_u32 m0, s{s_m0w}, {WRING + (n % 4) * 16384}')
        I(f's_mul_i32 s{s_t1}, s{s_kap}, {64*RS}')
        I(f's_add_u32 s{s_t1}, s{s_t1}, s{s_wb if n < 7 else s_w1b}')
        for q in range(4):
            I(f'buffer_load_dwordx4 v{vo+q}, {sr(srdw,4)}, s{s_t1} offen offset:{q*1024} lds', tag=f'w{n}')

    s_w1b = S.get()
    I(f's_mul_i32 s{s_wb}, s{s_c}, 192')
    I(f's_and_b32 s{s_wb}, s{s_wb}, 0xffffff80')
    I(f's_mul_i32 s{s_t0}, s{s_w}, {16*2688}')
    I(f's_add_u32 s{s_wb}, s{s_wb}, s{s_t0}')
    for n in range(3):
        issue_x(n, n * 16384)
        issue_w(n)
        adv_kap()
    stamp(0)
    rest_srds()
    make_tag()
    I(f's_lshl_b32 s{s_w1b}, s{s_c}, 8')
    I(f's_mul_i32 s{s_t0}, s{s_w}, {16*3584}')
    I(f's_add_u32 s{s_w1b}, s{s_w1b}, s{s_t0}')

    vXr = V.get(4); vWt = V.get(4); vWa = V.get(3)
    def x_read_addrs(base_sgpr):
        I(f'v_bfe_u32 v{vT0}, v{vLane}, 1, 3')
        I(f'v_xor_b32 v{vT0}, v{vT0}, v{vHi}')
        I(f'v_lshlrev_b32 v{vT2}, 7, v{vL31}')
        I(f'v_add_u32 v{vT2}, s{base_sgpr}, v{vT2}')
        for sg in range(4):
            I(f'v_xor_b32 v{vT3}, {2*sg}, v{vT0}')
            I(f'v_lshl_add_u32 v{vXr+sg}, v{vT3}, 4, v{vT2}')
    x_read_addrs(s_m0x)
    vR, vNC = V.get(), V.get()
    def tr_pieces():
        I(f'v_bfe_u32 v{vR}, v{vLane}, 2, 2')
        I(f'v_bfe_u32 v{vT0}, v{vLane}, 4, 1')
        I(f'v_lshlrev_b32 v{vNC}, 5, v{vT0}')
        I(f'v_and_b32 v{vT0}, 3, v{vLane}')
        I(f'v_lshl_add_u32 v{vNC}, v{vT0}, 3, v{vNC}')
    tr_pieces()
    I(f'v_lshl_add_u32 v{vT0}, v{vHi}, 3, v{vR}')
    I(f'v_lshl_add_u32 v{vT2}, v{vT0}, 8, v{vNC}')
    for ph in range(4):
        I(f'v_xor_b32 v{vT3}, {ph}, v{vR}')
        I(f'v_lshl_add_u32 v{vWt+ph}, v{vT3}, 6, v{vT2}')
    I(f's_and_b32 s{s_t0}, s{s_c}, 1')
    I(f's_cmp_eq_u32 s{s_t0}, 0')
    I(f's_cselect_b64 vcc, -1, 0')
    for t in range(3):
        I(f'v_cndmask_b32 v{vWa+t}, v{vWt+t+1}, v{vWt+t}, vcc')

    vKo = V.get(2); vVo = V.get(2); vKt = V.get(2); vVt = V.get(); vQt = V.get(2)
    vBM = V.get(8); vW3o = V.get(3); vW3tA = V.get(2); vW3tB = V.get(2); vL16 = V.get()
    vPq, vPh, vPo = V.get(), V.get(), V.get()
    def common_setup():
        I(f'v_lshlrev_b32 v{vL16}, 4, v{vLane}')
        I(f'v_mul_u32_u24 v{vT2}, 21504, v{vHi}')
        for st in range(2):
            I(f'v_lshlrev_b32 v{vT0}, 2, v{vHi}')
            I(f'v_xor_b32 v{vT0}, v{vT0}, v{vL31}')
            if st: I(f'v_xor_b32 v{vT0}, 8, v{vT0}')
            I(f'v_lshl_add_u32 v{vT3}, v{vT0}, 4, v{vT2}')
            if st: I(f'v_add_u32 v{vT3}, {43008-1024}, v{vT3}')
            I(f'v_cmp_gt_u32 vcc, 28, v{vT0}')
            I(f'v_mov_b32 v{vT0}, {OOB}')
            I(f'v_cndmask_b32 v{vKo+st}, v{vT0}, v{vT3}, vcc')
        I(f'v_lshl_add_u32 v{vVo}, v{vL31}, 4, v{vT2}')
        I(f'v_add_u32 v{vVo+1}, {43008-1024}, v{vVo}')
        I(f'v_bfe_u32 v{vT0}, v{vLane}, 4, 1')
        I(f'v_and_b32 v{vT1}, 1, v{vLane}')
        I(f'v_lshl_add_u32 v{vT2}, v{vT0}, 1, v{vT1}')
        I(f'v_lshlrev_b32 v{vT3}, 9, v{vT2}')
        I(f'v_bfe_u32 v{vT0}, v{vLane}, 1, 1')
        I(f'v_lshl_add_u32 v{vT3}, v{vT0}, 3, v{vT3}')
        I(f'v_lshlrev_b32 v{vT2}, 2, v{vT2}')
        I(f'v_lshl_add_u32 v{vT0}, v{vHi}, 3, v{vR}')
        I(f'v_xor_b32 v{vT0}, v{vT0}, v{vT2}')
        I(f's_lshl_b32 s{s_t0}, s{s_w}, 11')
        I(f's_add_u32 s{s_t0}, s{s_t0}, {KREG}')
        I(f'v_add_u32 v{vT3}, s{s_t0}, v{vT3}')
        I(f'v_lshl_add_u32 v{vKt}, v{vT0}, 4, v{vT3}')
        I(f'v_xor_b32 v{vT0}, 4, v{vT0}')
        I(f'v_lshl_add_u32 v{vKt+1}, v{vT0}, 4, v{vT3}')
        I(f'v_add_u32 v{vVt}, s{s_t0}, v{vL16}')
        I(f'v_lshrrev_b32 v{vT0}, 3, v{vLane}')
        I(f'v_mul_u32_u24 v{vT2}, 896, v{vT0}')
        I(f'v_bfe_u32 v{vT0}, v{vLane}, 2, 1')
        I(f'v_bfe_u32 v{vT1}, v{vLane}, 4, 1')
        I(f'v_xor_b32 v{vT0}, v{vT0}, v{vT1}')
        I(f'v_lshl_add_u32 v{vT2}, v{vT0}, 6, v{vT2}')
        I(f'v_and_b32 v{vT0}, 3, v{vLane}')
        I(f'v_lshl_add_u32 v{vW3o}, v{vT0}, 4, v{vT2}')
        I(f'v_add_u32 v{vW3o+1}, {7168-1024}, v{vW3o}')
        I(f'v_cmp_eq_u32 vcc, 0, v{vHi}')
        I(f'v_mov_b32 v{vT0}, {OOB}')
        I(f'v_cndmask_b32 v{vW3o+2}, v{vT0}, v{vW3o+1}, vcc')
        I(f's_lshl_b32 s{s_w3a}, s{s_w}, 14')
        I(f's_mul_i32 s{s_w3b}, s{s_w}, 10240')
        I(f's_add_u32 s{s_w3b}, s{s_w3b}, {W3B}')
        I(f'v_lshl_add_u32 v{vT0}, v{vHi}, 2, v{vR}')
        I(f'v_lshl_add_u32 v{vT2}, v{vT0}, 7, v{vNC}')
        I(f'v_lshrrev_b32 v{vT0}, 1, v{vR}')
        I(f's_lshr_b32 s{s_t0}, s{s_w}, 1')
        I(f'v_xor_b32 v{vT0}, s{s_t0}, v{vT0}')
        I(f'v_lshl_add_u32 v{vT3}, v{vT0}, 6, v{vT2}')
        I(f'v_add_u32 v{vW3tA}, s{s_w3a}, v{vT3}')
        I(f'v_add_u32 v{vW3tB}, s{s_w3b}, v{vT3}')
        I(f'v_xor_b32 v{vT3}, 64, v{vT3}')
        I(f'v_add_u32 v{vW3tA+1}, s{s_w3a}, v{vT3}')
        I(f'v_add_u32 v{vW3tB+1}, s{s_w3b}, v{vT3}')
        I(f's_lshl_b32 s{s_t0}, s{s_ns}, 7')
        I(f's_mul_i32 s{s_w2b}, s{s_w}, {448*896}')
        I(f's_add_u32 s{s_w2b}, s{s_w2b}, s{s_t0}')
        I(f's_mul_i32 s{s_wob}, s{s_w}, {112*896}')
        I(f's_add_u32 s{s_wob}, s{s_wob}, s{s_t0}')
        I(f's_and_b32 s{s_t0}, s{s_w}, 1')
        I(f's_lshl_b32 s{s_hb0}, s{s_mt}, 1')
        I(f's_add_u32 s{s_hb0}, s{s_hb0}, s{s_t0}')
        I(f's_xor_b32 s{s_hb1}, s{s_hb0}, 1')
        I(f'v_lshrrev_b32 v{vT0}, 4, v{vLane}')
        I(f's_mul_i32 s{s_t0}, s{s_w}, 3')
        I(f's_lshl_b32 s{s_t1}, s{s_i}, 2')
        I(f's_add_u32 s{s_t0}, s{s_t0}, s{s_t1}')
        I(f's_sub_u32 s{s_t0}, s{s_t0}, 8')
        I(f'v_add_u32 v{vT2}, s{s_t0}, v{vT0}')
        I(f'v_max_i32 v{vT2}, 0, v{vT2}')
        I(f'v_mov_b32 v{vT3}, s{s_T}')
        I(f'v_cmp_eq_u32 vcc, 3, v{vT0}')
        I(f'v_cndmask_b32 v{vT2}, v{vT2}, v{vT3}, vcc')
        I(f'v_and_b32 v{vT1}, 15, v{vLane}')
        I(f'v_lshlrev_b32 v{vT3}, 2, v{vT1}')
        I(f'v_lshl_add_u32 v{vPq}, v{vT2}, 6, v{vT3}')
        I(f'v_add_u32 v{vPq}, {WS_FQ}, v{vPq}')
        def bit_for(dst, off, first):
            I(f's_mul_i32 s{s_t2}, s{s_c}, 28')
            I(f's_add_u32 s{s_t2}, s{s_t2}, {off}')
            I(f's_mul_i32 s{s_t2}, s{s_t2}, 683')
            I(f's_lshr_b32 s{s_t2}, s{s_t2}, 16')
            if first: I(f's_lshl_b32 s{dst}, 1, s{s_t2}')
            else: I(f's_bitset1_b32 s{dst}, s{s_t2}')
        bit_for(s_t0, 448, True); bit_for(s_t0, 448+27, False); bit_for(s_t0, 896, False); bit_for(s_t0, 896+27, False)
        bit_for(s_t1, 0, True); bit_for(s_t1, 27, False)
        I(f's_bitset1_b32 s{s_t1}, 14')
        I(f's_lshl_b32 s{s_t2}, s{s_t0}, 16')
        I(f's_or_b32 s{sNeedQ}, s{s_t0}, s{s_t2}')
        I(f's_lshl_b32 s{s_t2}, s{s_t1}, 16')
        I(f's_or_b32 s{sNeedQ+1}, s{s_t0}, s{s_t2}')
        I(f's_lshl_b32 s{s_t0}, s{s_mt}, 7')
        I(f'v_lshl_add_u32 v{vT2}, v{vL31}, 2, s{s_t0}')
        I(f'v_add_u32 v{vPh}, {WS_FH}, v{vT2}')
        I(f'v_add_u32 v{vPo}, {WS_FO}, v{vT2}')
        I(f's_mul_i32 s{s_t0}, s{s_w}, 7')
        I(f's_lshr_b32 s{s_t0}, s{s_t0}, 1')
        I(f's_lshl_b32 s{s_t0}, 15, s{s_t0}')
        I(f's_bitset1_b32 s{s_t0}, 14')
        I(f's_lshl_b32 s{s_t1}, s{s_t0}, 16')
        I(f's_or_b32 s{sNeedH}, s{s_t0}, s{s_t1}')
        I(f's_mov_b32 s{sNeedH+1}, 0')
        I(f's_lshl_b32 s{s_t0}, s{s_w}, 2')
        I(f's_lshl_b32 s{s_t0}, 15, s{s_t0}')
        I(f's_lshl_b32 s{s_t1}, s{s_t0}, 16')
        I(f's_or_b32 s{sNeedO}, s{s_t0}, s{s_t1}')
        I(f's_mov_b32 s{sNeedO+1}, 0')
        I(f'v_lshlrev_b32 v{vT0}, 2, v{vHi}')
        I(f'v_sub_u32 v{vT0}, v{vL31}, v{vT0}')
        for r in range(16):
            I(f'v_cmp_le_i32 {sr(sMASK+2*r,2)}, {8*(r>>2)+(r&3)}, v{vT0}')
        I(f'v_mov_b32 v{vT2}, 0xffff')
        I(f'v_mov_b32 v{vT3}, 0xffff0000')
        for k in range(8):
            I(f'v_cndmask_b32 v{vT0}, 0, v{vT2}, {sr(sMASK+4*k,2)}')
            I(f'v_cndmask_b32 v{vT1}, 0, v{vT3}, {sr(sMASK+4*k+2,2)}')
            I(f'v_or_b32 v{vBM+k}, v{vT0}, v{vT1}')
        c = math.log2(math.e) / math.sqrt(28.0)
        I(f's_mov_b32 s{sSC}, {hex(f32bits(c))}')
        I(f's_mov_b32 s{sSC+1}, {hex(f32bits(c))}')
    E.wait(vm='code')
    common_setup()

    NSLOT = 13
    def w3_slot(k):
        sl = k % NSLOT
        return (s_w3b, vW3tB, sl * 2048) if sl < 5 else (s_w3a, vW3tA, (sl - 5) * 2048)
    def issue_w3(k):
        sb, _, off = w3_slot(k)
        I(f's_add_u32 m0, s{sb}, {off}')
        if k < 28:
            I(f's_add_u32 s{s_t1}, s{s_w2b}, {k*16*896}')
            sd, v1 = sW2, vW3o+1
        else:
            s = k - 28
            I(f's_add_u32 s{s_t1}, s{s_wob}, {(28*(s>>1)+16*(s&1))*896}')
            sd, v1 = sWO, (vW3o+2 if s & 1 else vW3o+1)
        I(f'buffer_load_dwordx4 v{vW3o}, {sr(sd,4)}, s{s_t1} offen lds', tag=f'w3_{k}')
        I(f'buffer_load_dwordx4 v{v1}, {sr(sd,4)}, s{s_t1} offen offset:1024 lds', tag=f'w3_{k}')

    acc = V.get(64, 4); wf = V.get(64, 4)
    def p1_step(n):
        a = n < 7
        nt = 3 if a else 4
        E.wait(vm=[f'w{n}', f'x{n}'])
        I('s_barrier')
        if n + 3 < 14: issue_w(n + 3)
        slot = (n % 4) * 16384
        def reads(sg):
            if a: I(f'ds_read_b128 {ar(16*n+4*sg,4)}, v{vXr+sg} offset:{(n%3)*16384}', tag=f'r{sg}')
            for t in range(nt):
                ad = vWa + t if a else vWt + t
                for h in range(2):
                    I(f'ds_read_b64_tr_b16 {vr(wf+16*sg+4*t+2*h,2)}, v{ad} offset:{slot+sg*4096+h*1024}', tag=f'r{sg}')
        def mf(sg):
            xf = ar(16*(n % 7)+4*sg, 4)
            for t in range(nt):
                w = vr(wf+16*sg+4*t, 4); d = vr(acc+16*t, 16)
                cc = '0' if (n % 7 == 0 and sg == 0) else d
                if a: I(f'v_mfma_f32_32x32x16_bf16 {d}, {xf}, {w}, {cc}')
                else: I(f'v_mfma_f32_32x32x16_bf16 {d}, {w}, {xf}, {cc}')
        reads(0); reads(1)
        E.wait(lgkm='r0'); mf(0); reads(2)
        E.wait(lgkm='r1'); mf(1); reads(3)
        E.wait(lgkm='r2'); mf(2)
        E.wait(lgkm='r3')
        if n + 3 < 7: issue_x(n + 3, (n % 3) * 16384)
        if n + 3 < 14: adv_kap()
        mf(3)

    for n in range(7): p1_step(n)
    stamp(1)
    pk = wf
    pk = V.get(32, 4)
    vQs = V.get()
    I(f'v_mul_u32_u24 v{vQs}, 21504, v{vHi}')
    I(f'v_lshl_add_u32 v{vQs}, v{vL31}, 4, v{vQs}')
    I(f's_mul_i32 s{s_t2}, s{s_T}, 86016')
    I(f's_mul_i32 s{s_t3}, s{s_c}, 1536')
    I(f's_add_u32 s{s_t2}, s{s_t2}, s{s_t3}')
    I(f's_add_u32 s{s_t2}, s{s_t2}, {WS_QKV}')
    I(f's_add_u32 s{s_t3}, s{s_t2}, 43008')
    for t in range(3):
        for st in range(2):
            d = pk + 8*t + 4*st
            for k in range(4):
                s0 = acc + 16*t + 8*st + 2*k
                I(f'v_cvt_pk_bf16_f32 v{d+k}, v{s0}, v{s0+1}')
            I(f'buffer_store_dwordx4 {vr(d,4)}, v{vQs}, {sr(sWS,4)}, s{s_t3 if st else s_t2} offen offset:{t*512} sc1', tag='qkvst')
    for n in range(7, 14):
        p1_step(n)
        if n == 8:
            for k in range(5): issue_w3(k)
        if n == 9:
            get_tag()
            set_flag(WS_FQ, f's{s_c}')
            stamp(2)
    stamp(3)
    I(f's_mul_i32 s{s_t2}, s{s_T}, {112*1024}')
    I(f's_lshl_b32 s{s_t3}, s{s_c}, 13')
    I(f's_add_u32 s{s_t2}, s{s_t2}, s{s_t3}')
    I(f's_add_u32 s{s_t2}, s{s_t2}, {WS_H}')
    I(f's_add_u32 s{s_t3}, s{s_t2}, 4096')
    for f in range(8):
        d = pk + 4*f
        for k in range(4):
            s0 = acc + 8*f + 2*k
            I(f'v_cvt_pk_bf16_f32 v{d+k}, v{s0}, v{s0+1}')
        for k in range(4):
            I(f'v_pk_max_i16 v{d+k}, v{d+k}, 0')
        I(f'buffer_store_dwordx4 {vr(d,4)}, v{vL16}, {sr(sWS,4)}, s{s_t3 if f >= 4 else s_t2} offen offset:{(f&3)*1024} sc1', tag='hst')
    I('s_barrier')
    for k in range(5, NSLOT): issue_w3(k)
    E.wait(vm='hst')
    set_flag(WS_FH, f's{s_c}')
    stamp(4)
    E.drain()
    I('s_branch L_p2')

    E.label('L_aux')
    E.restore(snap_aux)
    rest_srds(True)
    tr_pieces()
    E.wait(vm='code')
    common_setup()
    I(f's_cmp_eq_u32 s{s_c}, 15')
    I(f's_cbranch_scc1 L_aux2')
    sn = E.snapshot()
    I(f's_mul_i32 s{s_m0x}, s{s_w}, 28672')
    I(f's_mov_b32 s{s_kap}, 0')
    for n in range(7):
        issue_x(n, n * 4096); adv_kap()
    I(f'v_lshlrev_b32 v{vT0}, 4, v{vHi}')
    for s in range(28):
        I(f'buffer_load_dwordx4 {ar(112+4*s,4)}, v{vT0}, {sr(sGT,4)}, 0 offen offset:{32*s}', tag='gf')
    x_read_addrs(s_m0x)
    E.wait(vm='all')
    for n in range(7):
        for sg in range(4):
            I(f'ds_read_b128 {ar(16*n+4*sg,4)}, v{vXr+sg} offset:{n*4096}', tag='gx')
        E.wait(lgkm='all')
    for s in range(28):
        d = vr(acc, 16)
        I(f'v_mfma_f32_32x32x16_bf16 {d}, {ar(112+4*s,4)}, {ar(4*s,4)}, {"0" if s == 0 else d}')
    I(f'v_cvt_pk_bf16_f32 v{vT0}, v{acc}, v{acc}')
    I(f'v_and_b32 v{vT0}, 0xffff0000, v{vT0}')
    I(f'v_mul_f32 v{vT0}, {hex(f32bits(-math.log2(math.e)))}, v{vT0}')
    I(f'v_exp_f32 v{vT0}, v{vT0}')
    I(f'v_add_f32 v{vT0}, 1.0, v{vT0}')
    I(f'v_rcp_f32 v{vT0}, v{vT0}')
    I(f'v_cvt_pk_bf16_f32 v{vT0}, v{vT0}, v{vT0}')
    I(f'v_and_b32 v{vT2}, 0xffff0000, v{vT0}')
    I(f'v_sub_f32 v{vT0}, 1.0, v{vT2}')
    I(f'v_cvt_pk_bf16_f32 v{vT0}, v{vT0}, v{vT0}')
    I(f'v_and_b32 v{vT3}, 0xffff0000, v{vT0}')
    I(f'v_cmp_eq_u32 vcc, 0, v{vHi}')
    I(f'v_cndmask_b32 v{vT2}, v{vT3}, v{vT2}, vcc')
    I(f'v_lshlrev_b32 v{vT0}, 13, v{vHi}')
    I(f'v_lshl_add_u32 v{vT0}, v{vL31}, 2, v{vT0}')
    I(f's_lshl_b32 s{s_t2}, s{s_T}, 7')
    I(f's_add_u32 s{s_t2}, s{s_t2}, {WS_G}')
    I(f'buffer_store_dword v{vT2}, v{vT0}, {sr(sWS,4)}, s{s_t2} offen sc1', tag='gst')
    get_tag()
    set_flag(WS_FQ, 14)
    set_flag(WS_FH, 14)
    I('s_barrier')
    E.drain()
    E.restore(sn)
    E.label('L_aux2')
    get_tag()
    for k in range(NSLOT): issue_w3(k)
    E.drain()
    E.fence_hazards()

    E.label('L_p2')
    V.put(acc, 64); V.put(wf, 64); V.put(pk, 32)
    for r_, n_ in ((vXo, 4), (vWq, 4), (vW1, 4), (vXr, 4), (vWt, 4), (vWa, 3), (vQs, 1)): V.put(r_, n_)
    one4 = V.get(4, 4)
    for k in range(4): I(f'v_mov_b32 v{one4+k}, 0x3f803f80')
    I(f'v_lshrrev_b32 v{vT0}, 2, v{vLane}')
    I(f'v_lshlrev_b32 v{vT0}, 9, v{vT0}')
    I(f'v_and_b32 v{vT2}, 3, v{vLane}')
    I(f'v_lshl_add_u32 v{vT0}, v{vT2}, 4, v{vT0}')
    I(f's_mul_i32 s{s_t2}, s{s_w}, 6144')
    I(f's_add_u32 s{s_t0}, s{s_t2}, {VREG + 448}')
    I(f'v_add_u32 v{vT0}, s{s_t0}, v{vT0}')
    I('s_mov_b64 exec, 0x0000ffffffffffff' if False else 's_mov_b32 exec_hi, 0xffff')
    I(f'ds_write_b128 v{vT0}, {vr(one4,4)}', tag='ones')
    I('s_mov_b64 exec, -1')
    poll(vPq, sNeedQ)
    stamp(5)
    I(f's_mul_i32 s{s_t3}, s{s_c}, 448')
    I(f's_add_u32 s{s_t3}, s{s_t3}, {WS_QKV}')
    vG = V.get()
    I(f's_mul_i32 s{s_t1}, s{s_T}, 86016')
    I(f's_add_u32 s{s_t1}, s{s_t1}, s{s_t3}')
    I(f's_lshl_b32 s{s_t0}, s{s_w}, 11')
    I(f's_add_u32 m0, s{s_t0}, {QREG}')
    for st in range(2):
        I(f'buffer_load_dwordx4 v{vKo+st}, {sr(sWS,4)}, s{s_t1} offen offset:{st*1024} sc1 lds', tag='qkv')
    for j in range(3):
        I(f's_mul_i32 s{s_t0}, s{s_w}, 3')
        I(f's_lshl_b32 s{s_t1}, s{s_i}, 2')
        I(f's_add_u32 s{s_t0}, s{s_t0}, s{s_t1}')
        I(f's_add_i32 s{s_t0}, s{s_t0}, {j-8}')
        I(f's_max_i32 s{s_t0}, s{s_t0}, 0')
        I(f's_mul_i32 s{s_t0}, s{s_t0}, 86016')
        I(f's_add_u32 s{s_t0}, s{s_t0}, s{s_t3}')
        I(f's_add_u32 s{s_t1}, s{s_t0}, 7168')
        I(f's_add_u32 m0, s{s_t2}, {KREG + j*2048}')
        for st in range(2):
            I(f'buffer_load_dwordx4 v{vKo+st}, {sr(sWS,4)}, s{s_t1} offen offset:{st*1024} sc1 lds', tag='qkv')
        I(f's_add_u32 s{s_t1}, s{s_t0}, 14336')
        I(f's_add_u32 m0, s{s_t2}, {VREG + j*2048}')
        I('s_mov_b32 exec_lo, 0x0fffffff')
        I('s_mov_b32 exec_hi, 0x0fffffff')
        for st in range(2):
            I(f'buffer_load_dwordx4 v{vVo+st}, {sr(sWS,4)}, s{s_t1} offen offset:{st*1024} sc1 lds', tag='qkv')
        I('s_mov_b64 exec, -1')
    I(f'v_lshlrev_b32 v{vT0}, 2, v{vL31}')
    I(f's_lshl_b32 s{s_t0}, s{s_T}, 7')
    I(f's_add_u32 s{s_t0}, s{s_t0}, {WS_G}')
    I(f'buffer_load_dword v{vG}, v{vT0}, {sr(sWS,4)}, s{s_t0} offen sc1', tag='qkv')
    E.wait(vm='qkv', lgkm='all')
    I('s_barrier')
    stamp(6)
    V.put(one4, 4)
    Sx = V.get(144, 4); qf = V.get(8, 4); O = V.get(16, 4)
    vM = V.get(2, 2); vM2 = V.get(2, 2)
    KF = 0
    VF = 72
    def kread(dst_fn, off, tag):
        for dl in range(2):
            for rho in range(2):
                I(f'ds_read_b64_tr_b16 {dst_fn(4*dl+2*rho)}, v{vKt+rho} offset:{off+dl*256}', tag=tag)
    kread(lambda o: vr(qf+o, 2), QREG - KREG, 'q')
    order = [0, 8, 1, 2, 3, 4, 5, 6, 7]
    def smf(j):
        d = vr(Sx+16*j, 16)
        I(f'v_mfma_f32_32x32x16_bf16 {d}, {ar(KF+8*j,4)}, {vr(qf,4)}, 0')
        I(f'v_mfma_f32_32x32x16_bf16 {d}, {ar(KF+8*j+4,4)}, {vr(qf+4,4)}, {d}')
    kread(lambda o: ar(KF+8*order[0]+o, 2), order[0]*2048, f'k{order[0]}')
    kread(lambda o: ar(KF+8*order[1]+o, 2), order[1]*2048, f'k{order[1]}')
    for idx, j in enumerate(order):
        E.wait(lgkm=f'k{j}')
        smf(j)
        if idx + 2 < 9:
            jn = order[idx+2]
            kread(lambda o: ar(KF+8*jn+o, 2), jn*2048, f'k{jn}')
    for j in range(9):
        for st in range(2):
            I(f'ds_read_b128 {ar(VF+8*j+4*st,4)}, v{vVt} offset:{VREG-KREG+j*2048+st*1024}', tag=f'v{j}')
        if j % 4 == 3: E.wait(lgkm=f'v{j-2}')
    I(f's_cmp_ge_u32 s{s_T}, 8')
    I('s_cbranch_scc1 L_valid')
    I('s_nop 15')
    for j in range(8):
        I(f's_cmp_ge_u32 s{s_T}, {8-j}')
        I('s_cbranch_scc1 L_valid')
        for r in range(16): I(f'v_mov_b32 v{Sx+16*j+r}, 0xff000000')
    E.label('L_valid')
    for r in range(16):
        I(f'v_cndmask_b32 v{Sx+128+r}, v{Sx+r}, v{Sx+128+r}, {sr(sMASK+2*r,2)}')
    tiles = [8, 1, 2, 3, 4, 5, 6, 7]
    first = True
    for j in tiles:
        b = Sx + 16*j
        for k in range(0, 16, 4):
            if first:
                I(f'v_max_f32 v{vM}, v{b}, v{b+1}'); I(f'v_max_f32 v{vM2}, v{b+2}, v{b+3}'); first = False
            else:
                I(f'v_max3_f32 v{vM}, v{b+k}, v{b+k+1}, v{vM}')
                I(f'v_max3_f32 v{vM2}, v{b+k+2}, v{b+k+3}, v{vM2}')
    I(f'v_max_f32 v{vM}, v{vM}, v{vM2}')
    I(f'v_mov_b32 v{vM2}, v{vM}')
    I(f'v_permlane32_swap_b32 v{vM}, v{vM2}')
    I(f'v_max_f32 v{vM}, v{vM}, v{vM2}')
    I(f'v_mul_f32 v{vM}, s{sSC}, v{vM}')
    E.wait(lgkm='all')
    firstpv = [True]
    def pv(j, preg, st):
        d = vr(O, 16)
        I(f'v_mfma_f32_32x32x16_bf16 {d}, {ar(VF+8*j+4*st,4)}, {vr(preg,4)}, {"0" if firstpv[0] else d}')
        firstpv[0] = False
    for j in tiles:
        b = Sx + 16*j
        for st in range(2):
            bb = b + 8*st
            for k in range(0, 8, 2):
                I(f'v_pk_fma_f32 {vr(bb+k,2)}, {vr(bb+k,2)}, {sr(sSC,2)}, {vr(vM,2)} op_sel_hi:[1,1,0] neg_lo:[0,0,1] neg_hi:[0,0,1]')
            for k in range(8): I(f'v_exp_f32 v{bb+k}, v{bb+k}')
            for k in range(4): I(f'v_cvt_pk_bf16_f32 v{bb+k}, v{bb+2*k}, v{bb+2*k+1}')
            if j == 8:
                for k in range(4):
                    I(f'v_bfi_b32 v{bb+4+k}, v{vBM+4*st+k}, 0, v{bb+k}')
                    I(f'v_and_b32 v{bb+k}, v{vBM+4*st+k}, v{bb+k}')
                pv(8, bb, st); pv(0, bb+4, st)
            else:
                pv(j, bb, st)
    I(f'v_mov_b32 v{vM}, v{O+12}')
    I(f'v_mov_b32 v{vM2}, v{O+12}')
    I(f'v_permlane32_swap_b32 v{vM}, v{vM2}')
    I(f'v_rcp_f32 v{vM2}, v{vM2}')
    I(f'v_mul_f32 v{vM2}, v{vM2}, v{vG}')
    I(f'v_cmp_eq_u32 vcc, 0, v{vHi}')
    I(f'v_cndmask_b32 v{vM}, 0, v{vM2}, vcc')
    for r in range(16):
        I(f'v_mul_f32 v{O+r}, v{O+r}, v{vM if r >= 12 else vM2}')
    I(f's_lshl_b32 s{s_t2}, s{s_T}, 15')
    I(f's_lshl_b32 s{s_t3}, s{s_c}, 11')
    I(f's_add_u32 s{s_t2}, s{s_t2}, s{s_t3}')
    I(f's_add_u32 s{s_t2}, s{s_t2}, {WS_O}')
    for st in range(2):
        for k in range(4): I(f'v_cvt_pk_bf16_f32 v{qf+4*st+k}, v{O+8*st+2*k}, v{O+8*st+2*k+1}')
        I(f'buffer_store_dwordx4 {vr(qf+4*st,4)}, v{vL16}, {sr(sWS,4)}, s{s_t2} offen offset:{st*1024} sc1', tag='ost')
    stamp(7)
    E.wait(vm='ost')
    set_flag(WS_FO, f's{s_c}')
    I('s_barrier')
    stamp(8)
    I(f's_cmp_eq_u32 s{s_ns}, 7')
    I('s_cbranch_scc1 L_fin')
    V.put(Sx, 144); V.put(qf, 8); V.put(O, 16)

    accH = V.get(64, 4); accO = V.get(64, 4); bf = V.get(16, 4)
    vOm = V.get(2)
    poll(vPh, sNeedH)
    stamp(9)
    I(f's_mul_i32 s{s_t2}, s{s_w}, {28*1024}')
    I(f's_add_u32 s{s_t2}, s{s_t2}, {WS_H}')
    I(f's_mul_i32 s{s_t0}, s{s_hb0}, {112*1024}')
    I(f's_mul_i32 s{s_t3}, s{s_hb1}, {112*1024}')
    I(f's_add_u32 s{s_t3}, s{s_t3}, s{s_t2}')
    I(f's_add_u32 s{s_t2}, s{s_t2}, s{s_t0}')
    def issue_h(k):
        if k and k % 4 == 0:
            I(f's_add_u32 s{s_t2}, s{s_t2}, 4096'); I(f's_add_u32 s{s_t3}, s{s_t3}, 4096')
        for b in range(2):
            I(f'buffer_load_dwordx4 {ar(8*k+4*b,4)}, v{vL16}, {sr(sWS,4)}, s{s_t3 if b else s_t2} offen offset:{(k%4)*1024} sc1', tag=f'h{k}')
    HLOOK = 12
    for k in range(HLOOK): issue_h(k)
    I(f'v_lshlrev_b32 v{vT0}, 2, v{vL31}')
    for b, sb in ((0, s_hb0), (1, s_hb1)):
        I(f's_lshl_b32 s{s_t0}, s{sb}, 7')
        I(f's_add_u32 s{s_t0}, s{s_t0}, {WS_G + 0x2000}')
        I(f'buffer_load_dword v{vOm+b}, v{vT0}, {sr(sWS,4)}, s{s_t0} offen sc1', tag='om')
    def breads(k):
        _, va, off = w3_slot(k)
        for a in range(2):
            for h in range(2):
                I(f'ds_read_b64_tr_b16 {vr(bf+8*(k%2)+4*a+2*h,2)}, v{va+a} offset:{off+h*1024}', tag=f'b{k}')
    def afrag(k, b):
        return ar(8*k+4*b, 4) if k < 28 else ar(8*(k-28)+4*b, 4)
    def p3_mf(k):
        ac = accH if k < 28 else accO
        for a in range(2):
            for b in range(2):
                d = vr(ac+32*a+16*b, 16)
                I(f'v_mfma_f32_32x32x16_bf16 {d}, {vr(bf+8*(k%2)+4*a,4)}, {afrag(k,b)}, {"0" if k in (0, 28) else d}')
    E.wait(vm='w3_0'); breads(0)
    for k in range(36):
        if k + 1 < 36:
            E.wait(vm=f'w3_{k+1}'); breads(k + 1)
        E.wait(vm=f'h{k}', lgkm=f'b{k}')
        p3_mf(k)
        if k + NSLOT < 36: issue_w3(k + NSLOT)
        if k + HLOOK < 28: issue_h(k + HLOOK)
        if k == 20:
            stamp(10)
            poll(vPo, sNeedO)
            stamp(11)
            I(f's_lshl_b32 s{s_t2}, s{s_w}, 13')
            I(f's_add_u32 s{s_t2}, s{s_t2}, {WS_O}')
            I(f's_lshl_b32 s{s_t0}, s{s_hb0}, 15')
            I(f's_lshl_b32 s{s_t3}, s{s_hb1}, 15')
            I(f's_add_u32 s{s_t3}, s{s_t3}, s{s_t2}')
            I(f's_add_u32 s{s_t2}, s{s_t2}, s{s_t0}')
            for s in range(8):
                if s == 4:
                    I(f's_add_u32 s{s_t2}, s{s_t2}, 4096'); I(f's_add_u32 s{s_t3}, s{s_t3}, 4096')
                for b in range(2):
                    I(f'buffer_load_dwordx4 {ar(8*s+4*b,4)}, v{vL16}, {sr(sWS,4)}, s{s_t3 if b else s_t2} offen offset:{(s%4)*1024} sc1', tag=f'h{28+s}')
    stamp(12)
    vRw = V.get(3); vRr = V.get()
    for e in range(1, 4):
        I(f's_xor_b32 s{s_t0}, s{s_w}, {e}')
        I(f's_mul_i32 s{s_t0}, s{s_t0}, 12288')
        I(f's_add_u32 s{s_t0}, s{s_t0}, {RED + (e-1)*4096}')
        I(f'v_add_u32 v{vRw+e-1}, s{s_t0}, v{vL16}')
    I(f's_mul_i32 s{s_t0}, s{s_w}, 12288')
    I(f's_add_u32 s{s_t0}, s{s_t0}, {RED}')
    I(f'v_add_u32 v{vRr}, s{s_t0}, v{vL16}')
    for e in (1, 2, 3, 0):
        b = e & 1
        for r in range(16):
            I(f'v_fma_f32 v{accO+16*e+r}, v{accH+16*e+r}, v{vOm+b}, v{accO+16*e+r}')
            if e and r % 4 == 3:
                I(f'ds_write_b128 v{vRw+e-1}, {vr(accO+16*e+r-3,4)} offset:{(r//4)*1024}', tag='red')
    E.wait(lgkm='all')
    I('s_barrier')
    for e in range(3):
        for q in range(4):
            I(f'ds_read_b128 {vr(accH+16*e+4*q,4)}, v{vRr} offset:{e*4096+q*1024}', tag=f'rr{e}')
    I(f'v_mul_u32_u24 v{vT0}, 896, v{vL31}')
    I(f'v_lshl_add_u32 v{vT0}, v{vHi}, 4, v{vT0}')
    I(f's_mul_i32 s{s_t0}, s{s_hb0}, {32*896}')
    I(f's_lshl_b32 s{s_t1}, s{s_ns}, 7')
    I(f's_add_u32 s{s_t0}, s{s_t0}, s{s_t1}')
    I(f's_lshr_b32 s{s_t1}, s{s_w}, 1')
    I(f's_lshl_b32 s{s_t1}, s{s_t1}, 6')
    I(f's_add_u32 s{s_t0}, s{s_t0}, s{s_t1}')
    for e in range(3):
        E.wait(lgkm=f'rr{e}')
        for r in range(16): I(f'v_add_f32 v{accO+r}, v{accO+r}, v{accH+16*e+r}')
    for k in range(8): I(f'v_cvt_pk_bf16_f32 v{bf+k}, v{accO+2*k}, v{accO+2*k+1}')
    for p in range(2):
        I(f'v_permlane32_swap_b32 v{bf+4*p}, v{bf+4*p+2}')
        I(f'v_permlane32_swap_b32 v{bf+4*p+1}, v{bf+4*p+3}')
        I(f'buffer_store_dwordx4 {vr(bf+4*p,4)}, v{vT0}, {sr(sOUT,4)}, s{s_t0} offen offset:{32*p}', tag='out')
    E.label('L_fin')
    if stamps:
        I('s_waitcnt vmcnt(0)')
        stamp(13)
        I(f's_lshl_b32 s{s_t0}, s2, 2')
        I(f's_add_u32 s{s_t0}, s{s_t0}, s{s_w}')
        I(f's_lshl_b32 s{s_t0}, s{s_t0}, 8')
        I(f's_add_u32 s{s_t0}, s{s_t0}, {WS_STAMP}')
        I(f'v_lshlrev_b32 v{vT0}, 2, v{vLane}')
        I(f'buffer_store_dword v{vStamp}, v{vT0}, {sr(sWS,4)}, s{s_t0} offen')
    E.label('L_end')
    I('s_endpgm')

    head = open('cdna_kernels/' + NAME + '.s.ref').read().split('; Override')[0]
    out = head + f'; @launch grid=(256,1,1) block=(256,1,1) lds={LDS_BYTES}\n'
    out += f'''.amdgcn_target "amdgcn-amd-amdhsa--gfx950"
.text
.globl {NAME}_kernel
.p2align 8
.type {NAME}_kernel,@function
'''
    out += E.text()
    out += f'''.fill 8192, 4, 0xBF810000
.section .rodata,"a"
.p2align 6
.amdhsa_kernel {NAME}_kernel
  .amdhsa_next_free_vgpr 512
  .amdhsa_next_free_sgpr 102
  .amdhsa_accum_offset 256
  .amdhsa_group_segment_fixed_size 0
  .amdhsa_kernarg_size 80
  .amdhsa_user_sgpr_count 2
  .amdhsa_user_sgpr_kernarg_segment_ptr 1
  .amdhsa_system_sgpr_workgroup_id_x 1
.end_amdhsa_kernel
'''
    sys.stderr.write(f'instrs {E.nins} vgpr_hi {V.hi} sgpr_hi {S.hi}\n')
    return out

if __name__ == '__main__':
    st = len(sys.argv) > 2 and sys.argv[2] == 'stamps'
    open(sys.argv[1], 'w').write(generate(st))
```

```python
import re

REG_RE = re.compile(r'(?<![\w.])([vas])(?:(\d+)|\[(\d+):(\d+)\])(?![\w])')

def regs_of(tok):
    out = []
    for m in REG_RE.finditer(tok):
        k = m.group(1)
        if m.group(2) is not None:
            out.append((k, int(m.group(2))))
        else:
            out += [(k, i) for i in range(int(m.group(3)), int(m.group(4)) + 1)]
    if re.search(r'\bvcc\b', tok): out.append(('s', 'vcc'))
    if re.search(r'\bexec(_lo|_hi)?\b', tok): out.append(('s', 'exec'))
    if re.search(r'\bm0\b', tok): out.append(('s', 'm0'))
    return out

def split_ops(s):
    ops, depth, cur = [], 0, ''
    for ch in s:
        if ch == '[': depth += 1
        if ch == ']': depth -= 1
        if ch == ',' and depth == 0:
            ops.append(cur.strip()); cur = ''
        else:
            cur += ch
    if cur.strip(): ops.append(cur.strip())
    return ops

TRANS = ('v_exp_f32', 'v_log_f32', 'v_rcp_f32', 'v_rsq_f32', 'v_sqrt_f32', 'v_sin_f32', 'v_cos_f32')

class Ins:
    __slots__ = ('text', 'mn', 'kind', 'wr', 'rd', 'srcc', 'passes', 'states', 'storedata', 'lds')

def parse(text):
    t = text.split(';')[0].strip()
    mn, _, rest = t.partition(' ')
    ops = split_ops(rest)
    I = Ins(); I.text = text; I.mn = mn; I.wr = []; I.rd = []; I.srcc = []; I.passes = 0; I.states = 1
    I.storedata = []; I.lds = False
    if mn.startswith('v_mfma'):
        I.kind = 'mfma'; I.passes = 8 if '32x32x16' in mn else 4
        I.wr = regs_of(ops[0]); I.rd = regs_of(ops[1]) + regs_of(ops[2]); I.srcc = regs_of(ops[3])
    elif mn.startswith('v_'):
        I.kind = 'trans' if mn.replace('_e32', '').replace('_e64', '') in TRANS else 'valu'
        if mn.startswith('v_permlane') and 'swap' in mn:
            I.kind = 'permlane'
            I.wr = regs_of(ops[0]) + regs_of(ops[1]); I.rd = list(I.wr)
        elif mn.startswith('v_cmp'):
            I.wr = regs_of(ops[0]); I.rd = sum((regs_of(o) for o in ops[1:]), [])
        elif mn.startswith('v_readfirstlane') or mn.startswith('v_readlane'):
            I.kind = 'readlane'
            I.wr = regs_of(ops[0]); I.rd = sum((regs_of(o) for o in ops[1:]), [])
        elif mn.startswith('v_add_co') or mn.startswith('v_addc_co') or mn.startswith('v_sub_co'):
            I.wr = regs_of(ops[0]) + regs_of(ops[1]); I.rd = sum((regs_of(o) for o in ops[2:]), [])
        else:
            I.wr = regs_of(ops[0]); I.rd = sum((regs_of(o) for o in ops[1:]), [])
            if mn.startswith(('v_fmac', 'v_writelane')): I.rd += I.wr
    elif mn.startswith('ds_read'):
        I.kind = 'ds'; I.wr = regs_of(ops[0]); I.rd = regs_of(ops[1])
    elif mn.startswith('ds_write'):
        I.kind = 'ds'; I.rd = sum((regs_of(o) for o in ops), [])
    elif mn.startswith('buffer_load') or mn.startswith('global_load'):
        I.kind = 'vmem'
        if re.search(r'\blds\b', rest):
            I.lds = True
            I.rd = sum((regs_of(o) for o in ops), []) + [('s', 'm0')]
        else:
            I.wr = regs_of(ops[0]); I.rd = sum((regs_of(o) for o in ops[1:]), [])
    elif mn.startswith('buffer_store') or mn.startswith('global_store'):
        I.kind = 'vmem'; I.rd = sum((regs_of(o) for o in ops), [])
        data = ops[0] if mn.startswith('buffer_store') else ops[1]
        if mn.endswith('x4') or mn.endswith('x3'): I.storedata = regs_of(data)
    elif mn == 's_nop':
        I.kind = 'nop'; I.states = int(ops[0], 0) + 1
    elif mn.startswith('s_'):
        I.kind = 'salu'
        if mn.startswith(('s_cmp', 's_cbranch', 's_branch', 's_waitcnt', 's_barrier', 's_sleep', 's_endpgm', 's_setprio')):
            I.rd = sum((regs_of(o) for o in ops), [])
        else:
            I.wr = regs_of(ops[0]) if ops else []
            I.rd = sum((regs_of(o) for o in ops[1:]), [])
    else:
        raise ValueError('unknown instr ' + text)
    return I

VALUISH = ('valu', 'trans', 'permlane', 'readlane')

def need(p, c):
    n = 0
    pw = set(p.wr);
    crd = set(c.rd); cw = set(c.wr); cc = set(c.srcc)
    vw = {r for r in pw if r[0] in 'va'}
    sw = {r for r in pw if r[0] == 's'}
    if p.kind in VALUISH:
        if c.kind == 'mfma' and vw & (crd | cc): n = max(n, 2)
        if c.kind == 'permlane' and vw & crd: n = max(n, 2)
        if c.kind == 'readlane' and vw & crd: n = max(n, 1)
        if p.kind == 'trans' and c.kind in VALUISH + ('mfma',) and c.kind != 'trans' and vw & crd: n = max(n, 1)
        if p.kind == 'trans' and c.kind == 'trans' and vw & crd: n = max(n, 1)
        if sw:
            if c.kind in VALUISH and sw & crd: n = max(n, 4 if c.kind == 'readlane' else 2)
            if c.kind == 'vmem' and sw & crd: n = max(n, 5)
            if c.kind == 'salu' and sw & crd: n = max(n, 2)
    if p.kind == 'mfma':
        big = {4: 8, 8: 12}[p.passes]
        if c.kind == 'mfma':
            if vw & crd: n = max(n, big)
            if vw & cc:
                if not (p.wr == c.srcc and p.passes == c.passes): n = max(n, {4: 6, 8: 10}[p.passes])
            elif vw & cw: n = max(n, big)
        elif c.kind in VALUISH + ('ds', 'vmem'):
            if vw & (crd | cw): n = max(n, big)
        if c.kind in VALUISH and set(p.srcc) & cw: n = max(n, {4: 3, 8: 7}[p.passes])
    if p.kind == 'salu' and ('s', 'm0') in pw and c.kind == 'vmem' and c.lds: n = max(n, 1)
    if p.storedata and set(p.storedata) & cw and c.kind != 'salu': n = max(n, 2)
    return n

class Emitter:
    def __init__(self):
        self.lines = []
        self.hist = []
        self.vm = []
        self.lgkm = []
        self.smem = False
        self.nins = 0
        self.cnt = {}
        self.t = 0
        self.tm = 0
    def _tick(self, c):
        if c.kind == 'mfma':
            st = max(self.t, self.tm); self.t = st + 8; self.tm = st + 4 * c.passes
        elif c.kind == 'trans': self.t += 8
        elif c.kind == 'nop': self.t += max(4, c.states)
        elif c.kind == 'vmem': self.t += 8
        else: self.t += 4
    def collapse(self, tag='pre'):
        self.vm = [tag]
        assert not self.lgkm and not self.smem
    def raw(self, s):
        self.lines.append(s)
    def comment(self, s):
        self.lines.append('    ; ' + s)
    def label(self, name):
        self.lines.append(name + ':')
    def I(self, text, tag=None):
        c = parse(text)
        dist = 0; pad = 0
        for p in reversed(self.hist):
            if dist >= 20: break
            n = need(p, c)
            if n - dist > pad: pad = n - dist
            dist += p.states
        while pad > 0:
            k = min(pad, 16)
            nop = parse(f's_nop {k-1}')
            self.lines.append(f'    s_nop {k-1}'); self.hist.append(nop); pad -= k; self.nins += 1; self._tick(nop)
        self.lines.append('    ' + text)
        self.hist.append(c); self.nins += 1; self._tick(c)
        if len(self.hist) > 64: self.hist = self.hist[-40:]
        if tag is not None: self.cnt[tag] = self.cnt.get(tag, 0) + 1
        if c.kind == 'vmem': self.vm.append(tag)
        elif c.kind == 'ds': self.lgkm.append(tag)
        elif c.mn.startswith(('s_load', 's_memtime', 's_memrealtime')): self.smem = True
        return c
    def _cnt(self, q, tags):
        idx = -1
        for i, t in enumerate(q):
            if t in tags: idx = i
        if idx < 0: return None
        return len(q) - 1 - idx
    def wait(self, vm=None, lgkm=None):
        parts = []
        if vm is not None:
            if vm == 'all': n = 0 if self.vm else None
            else:
                n = self._cnt(self.vm, vm if isinstance(vm, (list, tuple, set)) else [vm])
            if n is not None:
                if n <= 63: parts.append(f'vmcnt({n})')
                self.vm = self.vm[len(self.vm) - n:] if n else []
        if lgkm is not None:
            if lgkm == 'all' or self.smem:
                n = 0 if (self.lgkm or self.smem) else None
                self.smem = False
            else:
                n = self._cnt(self.lgkm, lgkm if isinstance(lgkm, (list, tuple, set)) else [lgkm])
            if n is not None:
                assert n <= 15 or True
                parts.append(f'lgkmcnt({min(n,15)})')
                n = min(n, 15)
                self.lgkm = self.lgkm[len(self.lgkm) - n:] if n else []
        if parts: self.I('s_waitcnt ' + ' '.join(parts))
    def drain(self):
        self.I('s_waitcnt vmcnt(0) lgkmcnt(0)')
        self.vm = []; self.lgkm = []; self.smem = False
    def fence_hazards(self):
        self.I('s_nop 15')
    def snapshot(self):
        return (list(self.vm), list(self.lgkm), self.smem, list(self.hist), self.t, self.tm)
    def restore(self, s):
        self.vm, self.lgkm, self.smem, self.hist = list(s[0]), list(s[1]), s[2], list(s[3])
        self.t, self.tm = s[4], s[5]
    def text(self):
        return '\n'.join(self.lines) + '\n'

class Alloc:
    def __init__(self, n, start=0):
        self.free = [True] * n
        for i in range(start): self.free[i] = False
        self.hi = 0
    def get(self, n=1, align=1):
        i = 0
        while i + n <= len(self.free):
            if i % align == 0 and all(self.free[i:i+n]):
                for k in range(i, i+n): self.free[k] = False
                self.hi = max(self.hi, i + n)
                return i
            i += 1
        raise RuntimeError('out of regs')
    def put(self, i, n=1):
        for k in range(i, i+n):
            assert not self.free[k]
            self.free[k] = True
```

```python
import sys, math, struct
from asmlib import Emitter, Alloc

NAME = 'gated_mix__sliding_block__dense_activation_relu__prompt'
WS_F = 0x1000
WS_FO = 0x5000
WS_G = 0x6000
WS_STAMP = 0x10000
WS_QKV = 0x100000
WS_H = 0x700000
WS_O = 0xE00000
WS_SIZE = 0x1000000
XRING = 65536
KREG = 65536
VREG = KREG + 24576
RED = 65536
R2 = 114688
LDS_BYTES = 163840
OOB = 0x7F000000
SPIN_MAX = 20000
TAGINC = 0x9E3779B9

def f32bits(x): return struct.unpack('<I', struct.pack('<f', x))[0]

DEF = dict(aflag_g=36, vpace=72, pre_w3=2, latepoll_t=900, latechk_t=1700, opoll_k=18, ochk_k=22, epi_rate=6)

def generate(stamps=False, **kw):
    P = dict(DEF); P.update(kw)
    E = Emitter(); I = E.I
    V = Alloc(256, 1)
    S = Alloc(102, 3)
    def vr(i, n): return f'v[{i}:{i+n-1}]'
    def ar(i, n): return f'a[{i}:{i+n-1}]'
    def sr(i, n): return f's[{i}:{i+n-1}]'
    uid = [0]
    def L(p):
        uid[0] += 1; return f'L_{p}_{uid[0]}'
    MF = 'v_mfma_f32_32x32x16_bf16'

    sX, sWQ, sW1, sA1, sW2, sWO, sWS, sOUT = [S.get(4, 4) for _ in range(8)]
    kp = S.get(20, 4)
    s_w, s_i, s_c, s_mt, s_ns, s_T, s_t0, s_t1, s_t2, s_t3, s_cnt = [S.get() for _ in range(11)]
    p1s = [S.get() for _ in range(14)]
    s_kx, s_kw, s_xb, s_wa0, s_wa1, s_wb, s_m0x, s_m0w, s_u0, s_u1, s_rsA1, s_a1, s_bu, s_rho = p1s
    sP = S.get(2, 2); sGP = S.get(2, 2); sTM = S.get(2, 2)

    vStamp = V.get()
    def stamp(k):
        if not stamps: return
        I(f's_memrealtime {sr(sTM,2)}')
        E.wait(lgkm='all')
        I(f'v_writelane_b32 v{vStamp}, s{sTM}, {k}')

    E.raw(f'{NAME}_kernel:')
    I('s_cmp_ge_u32 s2, 256')
    I('s_cbranch_scc1 L_end')
    I(f's_load_dwordx16 {sr(kp,16)}, s[0:1], 0')
    I(f's_load_dwordx4 {sr(kp+16,4)}, s[0:1], 64')
    if stamps: I(f's_memrealtime {sr(sTM,2)}')
    vT0, vT1, vT2, vT3 = [V.get() for _ in range(4)]
    vLane, vHi, vL31, vCode = V.get(), V.get(), V.get(), V.get()
    I(f's_getpc_b64 {sr(sP,2)}')
    I(f's_lshr_b32 s{s_t1}, s2, 3')
    I(f'v_lshrrev_b32 v{vT0}, 6, v0')
    I(f'v_and_b32 v{vT1}, 3, v0')
    I(f'v_readfirstlane_b32 s{s_w}, v{vT0}')
    I(f'v_lshl_add_u32 v{vT1}, v{vT0}, 2, v{vT1}')
    I(f's_lshl_b32 s{s_t2}, s{s_t1}, 11')
    I(f'v_lshl_add_u32 v{vT1}, v{vT1}, 7, s{s_t2}')
    I(f'global_load_dword v{vCode}, v{vT1}, {sr(sP,2)}', tag='code')
    I(f'v_and_b32 v{vLane}, 63, v0')
    I(f's_and_b32 s{s_t0}, s2, 7')
    I(f's_and_b32 s{s_t2}, s{s_t1}, 3')
    I(f's_lshr_b32 s{s_ns}, s{s_t1}, 2')
    I(f's_lshl_b32 s{s_mt}, s{s_t0}, 2')
    I(f's_add_u32 s{s_mt}, s{s_mt}, s{s_t2}')
    I(f's_and_b32 s{s_i}, s{s_mt}, 15')
    I(f's_lshr_b32 s{s_t3}, s{s_t0}, 2')
    I(f's_lshl_b32 s{s_c}, s{s_t3}, 3')
    I(f's_add_u32 s{s_c}, s{s_c}, s{s_ns}')
    I(f's_lshl_b32 s{s_rho}, s{s_t2}, 1')
    I(f's_add_u32 s{s_rho}, s{s_rho}, s{s_ns}')
    I(f's_sub_u32 s{s_t0}, s{s_rho}, 7')
    I(f's_cmp_ge_u32 s{s_rho}, 7')
    I(f's_cselect_b32 s{s_rho}, s{s_t0}, s{s_rho}')
    I(f's_mov_b32 s{s_kx}, s{s_rho}')
    I(f's_mov_b32 s{s_kw}, s{s_rho}')
    I(f's_lshl_b32 s{s_T}, s{s_i}, 2')
    I(f's_add_u32 s{s_T}, s{s_T}, s{s_w}')
    def unit_of(dst, e):
        I(f's_and_b32 s{s_t0}, s{e}, 3')
        I(f's_mul_i32 s{s_t0}, s{s_t0}, 7')
        I(f's_lshr_b32 s{dst}, s{e}, 2')
        I(f's_add_u32 s{dst}, s{dst}, s{s_t0}')
    I(f's_sub_u32 s{s_t1}, s{s_c}, s{s_t3}')
    I(f's_sub_u32 s{s_t1}, s{s_t1}, 5')
    I(f's_add_u32 s{s_t2}, s{s_t3}, 9')
    I(f's_cmp_eq_u32 s{s_ns}, 7')
    I(f's_cselect_b32 s{s_t1}, s{s_t2}, s{s_t1}')
    unit_of(s_a1, s_t1)
    I(f's_add_u32 s{s_t2}, s{s_c}, 16')
    I(f's_cmp_lt_u32 s{s_c}, 5')
    I(f's_cselect_b32 s{s_a1}, s{s_t2}, s{s_a1}')
    I(f's_cselect_b32 s{s_rsA1}, 2688, 3584' if False else f's_movk_i32 s{s_t2}, 3584')
    I(f's_cselect_b32 s{s_rsA1}, 2688, s{s_t2}')
    vXo = V.get(4); vWq = V.get(2); vW1 = V.get(2); vWa1 = V.get(2); vWl = V.get(); vL8 = V.get()
    I(f'v_lshrrev_b32 v{vL8}, 3, v{vLane}')
    I(f'v_mul_u32_u24 v{vT2}, 896, v{vL8}')
    I(f'v_lshrrev_b32 v{vT0}, 4, v{vLane}')
    I(f'v_and_b32 v{vT3}, 7, v{vLane}')
    I(f'v_xor_b32 v{vT3}, v{vT3}, v{vT0}')
    I(f'v_lshl_add_u32 v{vXo}, v{vT3}, 4, v{vT2}')
    I(f'v_add_u32 v{vXo+2}, {2*(7168-1024)}, v{vXo}')
    I(f'v_xor_b32 v{vT3}, 4, v{vT3}')
    I(f'v_lshl_add_u32 v{vXo+1}, v{vT3}, 4, v{vT2}')
    I(f'v_add_u32 v{vXo+3}, {3*(7168-1024)}, v{vXo+1}')
    I(f'v_add_u32 v{vXo+1}, {7168-1024}, v{vXo+1}')
    I(f'v_and_b32 v{vT0}, 1, v{vT0}')
    I(f'v_lshlrev_b32 v{vT0}, 2, v{vT0}')
    I(f'v_and_b32 v{vT3}, 7, v{vLane}')
    I(f'v_xor_b32 v{vT3}, v{vT3}, v{vT0}')
    I(f'v_lshlrev_b32 v{vWl}, 4, v{vT3}')
    I(f'v_mul_u32_u24 v{vT2}, 2688, v{vL8}')
    I(f'v_add_u32 v{vWq}, v{vT2}, v{vWl}')
    I(f'v_add_u32 v{vWq+1}, {8*2688-1024}, v{vWq}')
    I(f'v_mul_u32_u24 v{vT2}, s{s_rsA1}, v{vL8}')
    I(f'v_add_u32 v{vWa1}, v{vT2}, v{vWl}')
    I(f's_lshl_b32 s{s_t2}, s{s_rsA1}, 3')
    I(f's_sub_u32 s{s_t2}, s{s_t2}, 1024')
    I(f'v_add_u32 v{vWa1+1}, s{s_t2}, v{vWa1}')
    I(f's_mul_i32 s{s_xb}, s{s_T}, {32*896}')
    I(f's_lshl_b32 s{s_m0w}, s{s_w}, 11')
    I(f's_lshl_b32 s{s_m0x}, s{s_w}, 12')
    I(f's_add_u32 s{s_m0x}, s{s_m0x}, {XRING}')
    I(f's_mul_i32 s{s_wa0}, s{s_w}, {16*2688}')
    I(f's_lshl_b32 s{s_t0}, s{s_c}, 7')
    I(f's_add_u32 s{s_wa0}, s{s_wa0}, s{s_t0}')
    I(f's_lshl_b32 s{s_rsA1}, s{s_rsA1}, 4')
    I(f's_mul_i32 s{s_wa1}, s{s_w}, s{s_rsA1}')
    I(f's_lshl_b32 s{s_t0}, s{s_a1}, 7')
    I(f's_add_u32 s{s_wa1}, s{s_wa1}, s{s_t0}')
    I(f's_lshl_b32 s{s_rsA1}, s{s_rsA1}, 2')
    E.wait(lgkm='all')
    def srd(d, p, nbytes):
        I(f's_mov_b32 s{d}, s{p}')
        I(f's_and_b32 s{d+1}, s{p+1}, 0xffff')
        I(f's_mov_b32 s{d+2}, {nbytes}')
        I(f's_mov_b32 s{d+3}, 0x00020000')
    srd(sX, kp+0, 2048*896)
    def adv(k):
        I(f's_add_u32 s{k}, s{k}, 1')
        I(f's_cmp_eq_u32 s{k}, 7')
        I(f's_cselect_b32 s{k}, 0, s{k}')
    def x_pieces(n):
        def mk(q):
            def f():
                I(f's_add_u32 m0, s{s_m0x}, {(n % 3) * 16384}')
                if q == 0:
                    I(f's_lshl_b32 s{s_u0}, s{s_kx}, 7')
                    I(f's_add_u32 s{s_u0}, s{s_u0}, s{s_xb}')
                I(f'buffer_load_dwordx4 v{vXo+q}, {sr(sX,4)}, s{s_u0} offen offset:{q*1024} lds', tag=f'c{n}')
                if q == 3: adv(s_kx)
            return f
        def g(q):
            def f():
                I(f'buffer_load_dwordx4 v{vXo+q}, {sr(sX,4)}, s{s_u0} offen offset:{q*1024} lds', tag=f'c{n}')
                if q == 3: adv(s_kx)
            return f
        return [mk(0), g(1), g(2), g(3)]
    def w_part(n, part, srdw, vo, rs, base, advance):
        def f0():
            I(f's_add_u32 m0, s{s_m0w}, {(n % 4) * 16384 + part * 8192}')
            I(f's_mul_i32 s{s_u1}, s{s_kw}, {rs}')
            I(f's_add_u32 s{s_u1}, s{s_u1}, s{base}')
            I(f'buffer_load_dwordx4 v{vo}, {sr(srdw,4)}, s{s_u1} offen lds', tag=f'c{n}')
        def f1():
            I(f'buffer_load_dwordx4 v{vo+1}, {sr(srdw,4)}, s{s_u1} offen offset:1024 lds', tag=f'c{n}')
            if advance: adv(s_kw)
        return [f0, f1]
    def w_pieces(n):
        if n < 7:
            return w_part(n, 0, sWQ, vWq, 64*2688, s_wa0, False) + w_part(n, 1, sA1, vWa1, f's{s_rsA1}', s_wa1, True)
        m = (n - 7) % 4
        r = w_part(n, 0, sW1, vW1, 64*3584, s_wb, True)
        if m < 3: r += w_part(n, 1, sW1, vW1, 64*3584, s_wb, True)
        return r
    for f in x_pieces(0): f()
    srd(sWQ, kp+2, 448*2688)
    srd(sW1, kp+8, 448*3584)
    I(f's_cmp_lt_u32 s{s_c}, 5')
    for q in range(3): I(f's_cselect_b32 s{sA1+q}, s{sWQ+q}, s{sW1+q}')
    I(f's_mov_b32 s{sA1+3}, 0x00020000')
    for f in w_pieces(0): f()
    for n in (1, 2):
        for f in x_pieces(n) + w_pieces(n): f()
    for f in w_pieces(3): f()
    srd(sWS, kp+18, WS_SIZE)
    vTag = V.get()
    I(f'v_mov_b32 v{vT0}, 0')
    I(f'buffer_load_dword v{vTag}, v{vT0}, {sr(sWS,4)}, 0 offen sc1', tag='c3')
    if stamps:
        I(f'v_mov_b32 v{vStamp}, 0')
        I(f'v_writelane_b32 v{vStamp}, s{sTM}, 15')
    stamp(0)
    srd(sWO, kp+4, 448*896)
    srd(sW2, kp+10, 1792*896)
    srd(sOUT, kp+14, 2048*896)
    I(f's_mov_b64 {sr(sGP,2)}, {sr(kp+12,2)}')
    I(f's_cmp_eq_u32 s{s_ns}, 7')
    I(f's_cselect_b32 s{sW2+2}, 0, s{sW2+2}')
    S.put(kp, 20)
    s_wc, s_ws, s_we, s_hc, s_hs, s_he, s_f1, s_f2, s_w3a, s_w3b, s_hb0 = [S.get() for _ in range(11)]
    sNeedQ, sNeedE, sNeedL, sNeedO = [S.get(2, 2) for _ in range(4)]

    I(f'v_lshrrev_b32 v{vHi}, 5, v{vLane}')
    I(f'v_and_b32 v{vL31}, 31, v{vLane}')
    vXr = V.get(4); vWt = V.get(2); vWc = V.get(); vQs = V.get(); vFa = V.get()
    vR, vNC, vL16 = V.get(), V.get(), V.get()
    I(f'v_bfe_u32 v{vT0}, v{vLane}, 1, 3')
    I(f'v_xor_b32 v{vT0}, v{vT0}, v{vHi}')
    I(f'v_lshlrev_b32 v{vT2}, 7, v{vL31}')
    I(f'v_add_u32 v{vT2}, s{s_m0x}, v{vT2}')
    for sg in range(4):
        I(f'v_xor_b32 v{vT3}, {2*sg}, v{vT0}')
        I(f'v_lshl_add_u32 v{vXr+sg}, v{vT3}, 4, v{vT2}')
    I(f'v_bfe_u32 v{vR}, v{vLane}, 2, 2')
    I(f'v_bfe_u32 v{vT0}, v{vLane}, 4, 1')
    I(f'v_lshlrev_b32 v{vNC}, 5, v{vT0}')
    I(f'v_and_b32 v{vT0}, 3, v{vLane}')
    I(f'v_lshl_add_u32 v{vNC}, v{vT0}, 3, v{vNC}')
    I(f'v_lshrrev_b32 v{vT0}, 1, v{vR}')
    I(f'v_lshl_add_u32 v{vT1}, v{vT0}, 6, v{vNC}')
    I(f'v_lshl_add_u32 v{vT1}, v{vR}, 7, v{vT1}')
    I(f'v_lshl_add_u32 v{vWt}, v{vHi}, 10, v{vT1}')
    I(f'v_xor_b32 v{vWt+1}, 64, v{vWt}')
    I(f's_and_b32 s{s_t0}, s{s_c}, 8')
    I(f's_lshl_b32 s{s_t0}, s{s_t0}, 3')
    I(f'v_xor_b32 v{vWc}, s{s_t0}, v{vWt}')
    vW3tA = V.get(2); vW3tB = V.get(2); vW3o = V.get(5)
    I(f's_lshl_b32 s{s_w3a}, s{s_w}, 14')
    I(f's_mul_i32 s{s_w3b}, s{s_w}, 12288')
    I(f's_add_u32 s{s_w3b}, s{s_w3b}, {R2}')
    I(f'v_lshl_add_u32 v{vT1}, v{vHi}, 9, v{vT1}')
    I(f's_lshr_b32 s{s_t0}, s{s_w}, 1')
    I(f's_lshl_b32 s{s_t0}, s{s_t0}, 6')
    I(f'v_xor_b32 v{vT1}, s{s_t0}, v{vT1}')
    I(f'v_add_u32 v{vW3tA}, s{s_w3a}, v{vT1}')
    I(f'v_add_u32 v{vW3tB}, s{s_w3b}, v{vT1}')
    I(f'v_xor_b32 v{vW3tA+1}, 64, v{vW3tA}')
    I(f'v_xor_b32 v{vW3tB+1}, 64, v{vW3tB}')
    I(f'v_mul_u32_u24 v{vT2}, 3584, v{vL8}')
    I(f'v_add_u32 v{vW1}, v{vT2}, v{vWl}')
    I(f'v_add_u32 v{vW1+1}, {8*3584-1024}, v{vW1}')
    I(f'v_mul_u32_u24 v{vT2}, 896, v{vL8}')
    I(f'v_add_u32 v{vW3o}, v{vT2}, v{vWl}')
    for q in range(1, 4): I(f'v_add_u32 v{vW3o+q}, {q*(7168-1024)}, v{vW3o}')
    vOOB = V.get()
    I(f'v_mov_b32 v{vOOB}, {OOB}')
    I(f'v_cmp_eq_u32 vcc, 0, v{vHi}')
    I(f'v_lshlrev_b32 v{vL16}, 4, v{vLane}')
    I(f'v_cndmask_b32 v{vW3o+4}, v{vOOB}, v{vW3o+3}, vcc')
    vQpad = V.get()
    I(f'v_mov_b32 v{vT0}, 0xf149')
    I(f'v_cndmask_b32 v{vQpad}, v{vT0}, 0, vcc')
    V.put(vWl); V.put(vL8)
    I(f's_add_u32 s{s_t1}, s{s_c}, 11')
    unit_of(s_bu, s_t1)
    I(f's_cmp_eq_u32 s{s_ns}, 7')
    I(f's_cselect_b32 s{s_t0}, 27, s{s_bu}')
    I(f's_lshl_b32 s{s_t0}, s{s_t0}, 7')
    I(f's_mul_i32 s{s_wb}, s{s_w}, {16*3584}')
    I(f's_add_u32 s{s_wb}, s{s_wb}, s{s_t0}')
    I(f'v_mul_u32_u24 v{vQs}, 21504, v{vHi}')
    I(f'v_lshl_add_u32 v{vQs}, v{vL31}, 4, v{vQs}')
    I(f's_add_u32 s{s_t0}, s{s_a1}, 32')
    I(f's_cmp_lt_u32 s{s_c}, 5')
    I(f's_cselect_b32 s{s_t0}, s{s_a1}, s{s_t0}')
    I(f's_sub_u32 s{s_t0}, s{s_t0}, s{s_c}')
    I(f'v_mul_u32_u24 v{vT0}, s{s_t0}, v{vLane}')
    I(f's_lshl_b32 s{s_t1}, s{s_T}, 6')
    I(f's_add_u32 s{s_t1}, s{s_t1}, s{s_c}')
    I(f'v_add_u32 v{vT0}, s{s_t1}, v{vT0}')
    I(f'v_lshlrev_b32 v{vFa}, 2, v{vT0}')
    vKo = V.get(2); vVo = V.get(2); vKt = V.get(2); vQt = V.get(2); vVt = V.get()
    I(f'v_mul_u32_u24 v{vT2}, 21504, v{vHi}')
    for st in range(2):
        I(f'v_lshlrev_b32 v{vT0}, 2, v{vHi}')
        I(f'v_xor_b32 v{vT0}, v{vT0}, v{vL31}')
        if st: I(f'v_xor_b32 v{vT0}, 8, v{vT0}')
        I(f'v_lshl_add_u32 v{vT3}, v{vT0}, 4, v{vT2}')
        I(f'v_cmp_gt_u32 vcc, 28, v{vT0}')
        if st: I(f'v_add_u32 v{vT3}, {43008-1024}, v{vT3}')
        I(f'v_cndmask_b32 v{vKo+st}, v{vOOB}, v{vT3}, vcc')
    I(f'v_mov_b32 v{vVo}, v{vQs}')
    I(f'v_add_u32 v{vVo+1}, {43008-1024}, v{vQs}')
    I(f'v_bfe_u32 v{vT0}, v{vLane}, 4, 1')
    I(f'v_and_b32 v{vT1}, 1, v{vLane}')
    I(f'v_lshl_add_u32 v{vT2}, v{vT0}, 1, v{vT1}')
    I(f'v_lshlrev_b32 v{vT3}, 9, v{vT2}')
    I(f'v_bfe_u32 v{vT0}, v{vLane}, 1, 1')
    I(f'v_lshl_add_u32 v{vT3}, v{vT0}, 3, v{vT3}')
    I(f'v_lshlrev_b32 v{vT2}, 2, v{vT2}')
    I(f'v_lshl_add_u32 v{vT0}, v{vHi}, 3, v{vR}')
    I(f'v_xor_b32 v{vT0}, v{vT0}, v{vT2}')
    I(f'v_lshl_add_u32 v{vT3}, v{vT0}, 4, v{vT3}')
    I(f's_add_u32 s{s_t0}, s{s_m0w}, {KREG}')
    I(f's_add_u32 s{s_t1}, s{s_w3a}, 12288')
    I(f'v_add_u32 v{vKt}, s{s_t0}, v{vT3}')
    I(f'v_add_u32 v{vQt}, s{s_t1}, v{vT3}')
    I(f'v_xor_b32 v{vKt+1}, 64, v{vKt}')
    I(f'v_xor_b32 v{vQt+1}, 64, v{vQt}')
    I(f'v_add_u32 v{vVt}, s{s_t0}, v{vL16}')
    V.put(vR); V.put(vNC)
    vH = V.get(2); vO = V.get(2)
    I(f's_and_b32 s{s_t0}, s{s_w}, 1')
    I(f's_lshl_b32 s{s_hb0}, s{s_mt}, 1')
    I(f's_add_u32 s{s_hb0}, s{s_hb0}, s{s_t0}')
    I(f's_xor_b32 s{s_t1}, s{s_hb0}, 1')
    for b, sb in ((0, s_hb0), (1, s_t1)):
        I(f's_mul_i32 s{s_t2}, s{sb}, {112*1024}')
        I(f's_cmp_eq_u32 s{s_ns}, 7')
        I(f's_cselect_b32 s{s_t2}, {OOB}, s{s_t2}')
        I(f'v_add_u32 v{vH+b}, s{s_t2}, v{vL16}')
        I(f's_lshl_b32 s{s_t2}, s{sb}, 15')
        I(f'v_add_u32 v{vO+b}, s{s_t2}, v{vL16}')
    I(f's_add_u32 s{s_f1}, s{s_mt}, s{s_ns}')
    I(f's_and_b32 s{s_f1}, s{s_f1}, 3')
    I(f's_and_b32 s{s_t0}, s{s_mt}, 3')
    I(f's_mul_i32 s{s_t0}, s{s_t0}, 5')
    I(f's_lshr_b32 s{s_t0}, s{s_t0}, 1')
    I(f's_mul_i32 s{s_t1}, s{s_ns}, 3')
    I(f's_lshr_b32 s{s_t1}, s{s_t1}, 1')
    I(f's_add_u32 s{s_f2}, s{s_t0}, s{s_t1}')
    I(f's_sub_u32 s{s_t0}, s{s_f2}, 10')
    I(f's_cmp_ge_u32 s{s_f2}, 10')
    I(f's_cselect_b32 s{s_f2}, s{s_t0}, s{s_f2}')
    I(f's_mul_i32 s{s_ws}, s{s_w}, {448*896}')
    I(f's_lshl_b32 s{s_t0}, s{s_ns}, 7')
    I(f's_add_u32 s{s_ws}, s{s_ws}, s{s_t0}')
    I(f's_add_u32 s{s_we}, s{s_ws}, {4*32*896}')
    I(f's_mul_i32 s{s_wc}, s{s_f1}, {32*896}')
    I(f's_add_u32 s{s_wc}, s{s_wc}, s{s_ws}')
    I(f's_mul_i32 s{s_hs}, s{s_w}, {28*1024}')
    I(f's_add_u32 s{s_hs}, s{s_hs}, {WS_H}')
    I(f's_add_u32 s{s_he}, s{s_hs}, 8192')
    I(f's_lshl_b32 s{s_hc}, s{s_f1}, 11')
    I(f's_add_u32 s{s_hc}, s{s_hc}, s{s_hs}')
    vPq, vPh, vPo, vPl0, vPl1 = [V.get() for _ in range(5)]
    I(f'v_lshrrev_b32 v{vT0}, 4, v{vLane}')
    I(f'v_and_b32 v{vT1}, 15, v{vLane}')
    I(f's_mul_i32 s{s_t0}, s{s_w}, 3')
    I(f's_lshl_b32 s{s_t1}, s{s_i}, 2')
    I(f's_add_u32 s{s_t0}, s{s_t0}, s{s_t1}')
    I(f's_sub_u32 s{s_t0}, s{s_t0}, 8')
    I(f'v_add_u32 v{vT2}, s{s_t0}, v{vT0}')
    I(f'v_max_i32 v{vT2}, 0, v{vT2}')
    I(f'v_lshlrev_b32 v{vT2}, 6, v{vT2}')
    I(f'v_add_u32 v{vT2}, 7, v{vT2}')
    I(f's_lshl_b32 s{s_t1}, s{s_T}, 6')
    I(f'v_mov_b32 v{vT3}, s{s_t1}')
    I(f'v_cmp_eq_u32 vcc, 3, v{vT0}')
    I(f'v_cndmask_b32 v{vT2}, v{vT2}, v{vT3}, vcc')
    I(f'v_add_u32 v{vT2}, v{vT2}, v{vT1}')
    I(f'v_lshlrev_b32 v{vPq}, 2, v{vT2}')
    I(f's_lshl_b32 s{s_t0}, s{s_mt}, 1')
    I(f'v_add_u32 v{vT2}, s{s_t0}, v{vT0}')
    I(f'v_lshl_add_u32 v{vPo}, v{vT2}, 4, v{vT1}')
    I(f'v_lshlrev_b32 v{vPo}, 2, v{vPo}')
    I(f'v_lshlrev_b32 v{vT2}, 6, v{vT2}')
    I(f'v_cmp_eq_u32 vcc, 0, v{vHi}')
    I(f's_mul_i32 s{s_t0}, s{s_w}, 7')
    I(f's_add_u32 s{s_t0}, s{s_t0}, 32')
    I(f'v_cndmask_b32 v{vT2}, v{vT3}, v{vT2}, vcc')
    I(f'v_cndmask_b32 v{vPo}, v{vOOB}, v{vPo}, vcc')
    I(f'v_add_u32 v{vT3}, s{s_t0}, v{vT1}')
    I(f'v_cmp_gt_u32 vcc, 8, v{vT1}')
    I(f'v_cndmask_b32 v{vT3}, 21, v{vT3}, vcc')
    I(f'v_add_u32 v{vT2}, v{vT2}, v{vT3}')
    I(f'v_lshlrev_b32 v{vPh}, 2, v{vT2}')
    I(f's_mul_i32 s{s_t0}, s{s_c}, 28')
    I(f's_lshr_b32 s{s_t1}, s{s_t0}, 6')
    I(f's_lshl_b32 s{s_t1}, 1, s{s_t1}')
    I(f's_add_u32 s{s_t0}, s{s_t0}, 27')
    I(f's_lshr_b32 s{s_t0}, s{s_t0}, 6')
    I(f's_bitset1_b32 s{s_t1}, s{s_t0}')
    I(f's_mul_i32 s{s_t0}, s{s_t1}, 129')
    I(f's_mul_i32 s{sNeedQ}, s{s_t0}, 0x10001')
    I(f's_lshl_b32 s{s_t1}, s{s_t1}, 16')
    I(f's_or_b32 s{sNeedQ+1}, s{s_t0}, s{s_t1}')
    I(f's_cmp_eq_u32 s{s_w}, 3')
    I(f's_mov_b32 s{s_t0}, 0x017c017c')
    I(f's_cselect_b32 s{sNeedL}, 0x01fc01fc, s{s_t0}')
    I(f's_cmp_eq_u32 s{s_ns}, 7')
    I(f's_cselect_b32 s{sNeedL}, 0, s{sNeedL}')
    I(f's_cselect_b32 s{sNeedE}, 0, 0x00030003')
    I(f's_mov_b32 s{sNeedL+1}, 0x100')
    I(f's_mov_b32 s{sNeedE+1}, 0')
    I(f's_lshl_b32 s{s_t0}, s{s_w}, 2')
    I(f's_lshl_b32 s{sNeedO}, 0x000f000f, s{s_t0}')
    I(f's_mov_b32 s{sNeedO+1}, 0')

    def flag_store(soff):
        I(f'v_mov_b32 v{vT0}, 0')
        I('s_mov_b64 exec, 1')
        I(f'buffer_store_dword v{vTag}, v{vT0}, {sr(sWS,4)}, s{soff} offen sc1', tag='flagst')
        I('s_mov_b64 exec, -1')
    def flag_T(idx):
        I(f's_lshl_b32 s{s_t0}, s{s_T}, 8')
        if isinstance(idx, int):
            I(f's_add_u32 s{s_t0}, s{s_t0}, {WS_F + 4*idx}')
        else:
            sg_, add = idx
            I(f's_lshl_b32 s{s_t1}, s{sg_}, 2')
            I(f's_add_u32 s{s_t0}, s{s_t0}, s{s_t1}')
            I(f's_add_u32 s{s_t0}, s{s_t0}, {WS_F + 4*add}')
        flag_store(s_t0)

    def poll_issue(dst, vaddr, base, tag):
        I(f's_movk_i32 s{s_cnt}, {base}')
        I(f'buffer_load_dword v{dst}, v{vaddr}, {sr(sWS,4)}, s{s_cnt} offen sc1', tag=tag)
    def poll_check(dst, vaddr, base, tag, need):
        lab = L('poll'); done = L('pollok')
        E.wait(vm=tag)
        I(f'v_cmp_ne_u32 vcc, v{dst}, v{vTag}')
        I(f's_and_b64 {sr(sP,2)}, vcc, {sr(need,2)}')
        I(f's_cbranch_scc0 {done}')
        sn = E.snapshot()
        I(f's_mov_b32 s{s_cnt}, 0')
        I(f's_movk_i32 s{s_t0}, {base}')
        E.label(lab)
        I(f'buffer_load_dword v{dst}, v{vaddr}, {sr(sWS,4)}, s{s_t0} offen sc1')
        I('s_waitcnt vmcnt(0)')
        I(f'v_cmp_ne_u32 vcc, v{dst}, v{vTag}')
        I(f's_add_u32 s{s_cnt}, s{s_cnt}, 1')
        I(f's_and_b64 {sr(sP,2)}, vcc, {sr(need,2)}')
        I(f's_cbranch_scc0 {done}')
        I(f's_cmp_lt_u32 s{s_cnt}, {SPIN_MAX}')
        I(f's_cbranch_scc1 {lab}')
        E.restore(sn)
        E.label(done)

    def w3_slot(p):
        sl = p % 7
        return (s_w3b, vW3tB, sl * 4096) if sl < 3 else (s_w3a, vW3tA, (sl - 3) * 4096)
    def stream_adv(cur, st, en, step, p, nxt):
        if p in (3, 13): nxt(p)
        elif p < 17:
            I(f's_add_u32 s{cur}, s{cur}, {step}')
            I(f's_cmp_eq_u32 s{cur}, s{en}')
            I(f's_cselect_b32 s{cur}, s{st}, s{cur}')
    def w_next(p):
        if p == 3:
            I(f's_mov_b32 s{s_ws}, s{s_we}')
            I(f's_add_u32 s{s_we}, s{s_ws}, {10*32*896}')
            I(f's_mul_i32 s{s_wc}, s{s_f2}, {32*896}')
        else:
            I(f's_mul_i32 s{s_ws}, s{s_w}, {112*896}')
            I(f's_lshl_b32 s{s_wc}, s{s_ns}, 7')
            I(f's_add_u32 s{s_ws}, s{s_ws}, s{s_wc}')
            I(f's_add_u32 s{s_we}, s{s_ws}, {112*896}')
            I(f's_mul_i32 s{s_wc}, s{s_f1}, {28*896}')
        I(f's_add_u32 s{s_wc}, s{s_wc}, s{s_ws}')
    def h_next(p):
        if p == 3:
            I(f's_mov_b32 s{s_hs}, s{s_he}')
            I(f's_add_u32 s{s_he}, s{s_hs}, 20480')
            I(f's_lshl_b32 s{s_hc}, s{s_f2}, 11')
        else:
            I(f's_lshl_b32 s{s_hs}, s{s_w}, 13')
            I(f's_add_u32 s{s_hs}, s{s_hs}, {WS_O}')
            I(f's_add_u32 s{s_he}, s{s_hs}, 8192')
            I(f's_lshl_b32 s{s_hc}, s{s_f1}, 11')
        I(f's_add_u32 s{s_hc}, s{s_hc}, s{s_hs}')
    def w3_pieces(p):
        sb, _, off = w3_slot(p)
        sd = sW2 if p < 14 else sWO
        def mk(q):
            def f():
                if q == 0: I(f's_add_u32 m0, s{sb}, {off}')
                vo = vW3o + (4 if (q == 3 and p >= 14) else q)
                I(f'buffer_load_dwordx4 v{vo}, {sr(sd,4)}, s{s_wc} offen offset:{q*1024} lds', tag=f'w3_{2*p+q//2}')
                if q == 3: stream_adv(s_wc, s_ws, s_we, (32 if p < 14 else 28) * 896, p, w_next)
            return f
        return [mk(q) for q in range(4)]
    def areg(k, b):
        return ar(8*(k % 28) + 4*b, 4)
    def h_pieces(p):
        vo = vH if p < 14 else vO
        def mk(q):
            def f():
                s_, b = q >> 1, q & 1
                I(f'buffer_load_dwordx4 {areg(2*p+s_, b)}, v{vo+b}, {sr(sWS,4)}, s{s_hc} offen offset:{s_*1024} sc1', tag=f'h{2*p+s_}')
                if q == 3: stream_adv(s_hc, s_hs, s_he, 2048, p, h_next)
            return f
        return [mk(q) for q in range(4)]

    acc = V.get(64, 4); accB = V.get(32, 4); wf = V.get(64, 4); pk = V.get(32, 4)
    def trd(g, idx, va, off):
        return (f'ds_read_b64_tr_b16 {vr(wf+16*(g%4)+2*idx,2)}, v{va} offset:{off}')
    def grpA(g, qq):
        n, sg = g >> 2, g & 3
        rd = [f'ds_read_b128 {ar(4*g,4)}, v{vXr+sg} offset:{(n%3)*16384}']
        mf = []
        for t in range(4):
            for h in range(2):
                rd.append(trd(g, 2*t+h, vWt + (t & 1), (n%4)*16384 + (t>>1)*8192 + sg*2048 + h*512))
            d = vr(acc+16*t, 16); w = vr(wf+16*(g%4)+4*t, 4); x = ar(4*g, 4)
            a, b = (x, w) if (t < 2 or qq) else (w, x)
            mf.append(f'{MF} {d}, {a}, {b}, {"0" if g == 0 else d}')
        return dict(rd=rd, mf=mf, ch=n)
    def grpB(g, j, ch0, ac):
        n = ch0 + (j >> 2); rd = []; mf = []
        for u in range(2):
            ss = 2*j + u; m, sg = ss >> 2, ss & 3
            for t in range(2):
                for h in range(2):
                    rd.append(trd(g, 4*u+2*t+h, vWt + t, (n%4)*16384 + (m&1)*8192 + sg*2048 + h*512))
                d = vr(ac+16*t, 16)
                mf.append(f'{MF} {d}, {vr(wf+16*(g%4)+8*u+4*t,4)}, {ar(4*ss,4)}, {"0" if ss == 0 else d}')
        return dict(rd=rd, mf=mf, ch=n)
    def grpC(g, m, ac):
        n = 7 + (m >> 1); rd = []; mf = []
        for sg in range(4):
            for h in range(2):
                rd.append(trd(g, 2*sg+h, vWc, (n%4)*16384 + (m&1)*8192 + sg*2048 + h*512))
            d = vr(ac, 16)
            mf.append(f'{MF} {d}, {vr(wf+16*(g%4)+4*sg,4)}, {ar(16*m+4*sg,4)}, {"0" if m == 0 and sg == 0 else d}')
        return dict(rd=rd, mf=mf, ch=n)
    def grpG(g, m, ac):
        d = vr(ac, 16)
        return dict(rd=[], ch=10, vm='gf', mf=[f'{MF} {d}, {ar(112+16*m+4*sg,4)}, {ar(16*m+4*sg,4)}, {"0" if m == 0 and sg == 0 else d}' for sg in range(4)])

    vq = []
    eq = []
    def run_groups(G, g0, g1, lastch, hooks):
        for g in range(g0, g1):
            if g in hooks: hooks[g]()
            cur = G[g]
            nxt = G[g+2] if g + 2 < len(G) else None
            rd = list(nxt['rd']) if nxt else []
            bound = nxt is not None and nxt['ch'] != G[g+1]['ch']
            E.wait(lgkm=f'r{g}', vm=cur.get('vm'))
            per = [3, 2, 2, 2] if not bound else [0, 3, 3, 3]
            for m in range(4):
                I(cur['mf'][m])
                if bound and m == 1:
                    n1 = nxt['ch']
                    E.wait(vm=f'c{n1}', lgkm='all')
                    I('s_barrier')
                    if n1 + 2 < 7: vq.extend(x_pieces(n1 + 2))
                    if n1 + 3 <= lastch: vq.extend(w_pieces(n1 + 3))
                for _ in range(per[m]):
                    if rd: I(rd.pop(0), tag=f'r{g+2}')
                if vq and (m & 1): vq.pop(0)()
                for _ in range(P['epi_rate']):
                    if eq: eq.pop(0)()
            assert not rd

    def q_u(s): return lambda: I(s)
    def epi_q(ac, u_sgpr, pkb, tag):
        def base():
            I(f's_mul_i32 s{s_t2}, s{s_T}, 86016')
            I(f's_lshl_b32 s{s_t3}, s{u_sgpr}, 10')
            I(f's_add_u32 s{s_t2}, s{s_t2}, s{s_t3}')
            I(f's_add_u32 s{s_t2}, s{s_t2}, {WS_QKV}')
            I(f's_add_u32 s{s_t3}, s{s_t2}, 43008')
        r = [base]
        for t in range(2):
            for st in range(2):
                d = pkb + 8*t + 4*st
                for k in range(4):
                    s0 = ac + 16*t + 8*st + 2*k
                    r.append(q_u(f'v_cvt_pk_bf16_f32 v{d+k}, v{s0}, v{s0+1}'))
                r.append(lambda d=d, st=st, t=t: I(f'buffer_store_dwordx4 {vr(d,4)}, v{vQs}, {sr(sWS,4)}, s{s_t3 if st else s_t2} offen offset:{t*512} sc1', tag=tag))
        return r
    def epi_h(ac, u_sgpr, pkb, tag, nt=2, half=False):
        def base():
            I(f's_mul_i32 s{s_t2}, s{s_T}, {112*1024}')
            if half:
                I(f's_and_b32 s{s_t3}, s{s_c}, 8')
                I(f's_lshl_b32 s{s_t3}, s{s_t3}, 8')
                I(f's_add_u32 s{s_t3}, s{s_t3}, {27*4096}')
            else:
                I(f's_lshl_b32 s{s_t3}, s{u_sgpr}, 12')
            I(f's_add_u32 s{s_t2}, s{s_t2}, s{s_t3}')
            I(f's_add_u32 s{s_t2}, s{s_t2}, {WS_H}')
        r = [base]
        for f in range(2*nt):
            d = pkb + 4*f
            for k in range(4):
                s0 = ac + 8*f + 2*k
                r.append(q_u(f'v_cvt_pk_bf16_f32 v{d+k}, v{s0}, v{s0+1}'))
            for k in range(4):
                r.append(q_u(f'v_pk_max_i16 v{d+k}, v{d+k}, 0'))
            r.append(lambda d=d, f=f: I(f'buffer_store_dwordx4 {vr(d,4)}, v{vL16}, {sr(sWS,4)}, s{s_t2} offen offset:{f*1024} sc1', tag=tag))
        return r
    cscale = hex(f32bits(math.log2(math.e) / math.sqrt(28.0)))
    def scale_q(cond):
        lab = L('nosc')
        if cond:
            I(f's_cmp_ge_u32 s{s_c}, 7')
            I(f's_cbranch_scc1 {lab}')
        I(f's_mov_b32 s{s_t0}, {cscale}')
        for r in range(32): I(f'v_mul_f32 v{acc+r}, s{s_t0}, v{acc+r}')
        if cond:
            E.label(lab)
            E.hist = E.hist_save
    def a_flag():
        E.wait(vm='ast')
        I(f's_movk_i32 s{s_t0}, {WS_F}')
        I('s_mov_b64 exec, 3')
        I(f'buffer_store_dword v{vTag}, v{vFa}, {sr(sWS,4)}, s{s_t0} offen sc1', tag='flagst')
        I('s_mov_b64 exec, -1')
        stamp(2)
    def mk_tag():
        I(f'v_add_u32 v{vTag}, {hex(TAGINC)}, v{vTag}')
    def start_A(G):
        E.wait(vm='c0')
        stamp(16)
        I('s_barrier')
        for g in (0, 1):
            for r in G[g]['rd']: I(r, tag=f'r{g}')
    def epiA(qq, cond):
        def f():
            stamp(1)
            if cond is not None:
                def sc():
                    E.hist_save = list(E.hist)
                    scale_q(cond)
                eq.append(sc)
            eq.extend(epi_q(acc, s_c, pk, 'ast'))
            eq.extend(epi_q(acc+32, s_a1, pk+16, 'ast') if qq else epi_h(acc+32, s_a1, pk+16, 'ast'))
        return f
    def w3_early():
        for p in range(3): vq.extend(w3_pieces(p))
    def finish_B():
        assert not eq
        while vq: vq.pop(0)()
        stamp(3)
        for f in epi_h(accB, s_bu, pk, 'bst'): f()
        E.wait(lgkm='all')

    I(f's_cmp_lt_u32 s{s_c}, 5')
    I('s_cbranch_scc1 L_qq')
    snap0 = E.snapshot()
    GA = [grpA(g, False) for g in range(28)]
    GL = GA + [grpB(28+j, j, 7, accB) for j in range(14)]
    start_A(GL)
    run_groups(GL, 0, 26, 10, {16: mk_tag})
    I(f's_cmp_eq_u32 s{s_ns}, 7')
    I('s_cbranch_scc1 L_heavy')
    snap1 = E.snapshot(); vq1 = list(vq)
    run_groups(GL, 26, 42, 10, {28: epiA(False, True), 33: w3_early, P['aflag_g']: a_flag})
    finish_B()
    I('s_branch L_p2')
    E.label('L_heavy')
    E.restore(snap1); vq[:] = vq1
    accG = accB + 16
    GH = GA + [grpC(28+m, m, accB) for m in range(7)] + [grpG(35+m, m, accG) for m in range(7)] + [grpB(42+j, j, 11, acc) for j in range(14)]
    def heavy_prep():
        epiA(False, None)()
        def rebase():
            I(f's_lshl_b32 s{s_t0}, s{s_bu}, 7')
            I(f's_mul_i32 s{s_wb}, s{s_w}, {16*3584}')
            I(f's_add_u32 s{s_wb}, s{s_wb}, s{s_t0}')
        assert not vq
        rebase()
        srd(sX, sGP, 896)
        I(f'v_lshlrev_b32 v{vT1}, 4, v{vHi}')
        for m in range(7):
            I(f's_lshl_b32 s{s_u0}, s{s_kx}, 7')
            for sg in range(4):
                I(f'buffer_load_dwordx4 {ar(112+16*m+4*sg,4)}, v{vT1}, {sr(sX,4)}, s{s_u0} offen offset:{32*sg}', tag='gf')
            adv(s_kx)
    def epiC(): eq.extend(epi_h(accB, None, pk, 'cst', nt=1, half=True))
    def epiG():
        def g():
            I(f'v_cvt_pk_bf16_f32 v{vT0}, v{accG}, v{accG}')
            I(f'v_and_b32 v{vT0}, 0xffff0000, v{vT0}')
            I(f'v_mul_f32 v{vT0}, {hex(f32bits(-math.log2(math.e)))}, v{vT0}')
            I(f'v_exp_f32 v{vT0}, v{vT0}')
            I(f'v_add_f32 v{vT0}, 1.0, v{vT0}')
            I(f'v_rcp_f32 v{vT0}, v{vT0}')
            I(f'v_cvt_pk_bf16_f32 v{vT0}, v{vT0}, v{vT0}')
            I(f'v_and_b32 v{vT2}, 0xffff0000, v{vT0}')
            I(f'v_sub_f32 v{vT0}, 1.0, v{vT2}')
            I(f'v_cvt_pk_bf16_f32 v{vT0}, v{vT0}, v{vT0}')
            I(f'v_and_b32 v{vT3}, 0xffff0000, v{vT0}')
            I(f'v_cmp_eq_u32 vcc, 0, v{vHi}')
            I(f'v_lshlrev_b32 v{vT0}, 13, v{vHi}')
            I(f'v_lshl_add_u32 v{vT0}, v{vL31}, 2, v{vT0}')
            I(f'v_cndmask_b32 v{vT2}, v{vT3}, v{vT2}, vcc')
            I(f's_lshl_b32 s{s_t2}, s{s_T}, 7')
            I(f's_add_u32 s{s_t2}, s{s_t2}, {WS_G}')
            I(f'buffer_store_dword v{vT2}, v{vT0}, {sr(sWS,4)}, s{s_t2} offen sc1', tag='gst')
        eq.append(g)
    def cg_flag():
        E.wait(vm='gst')
        flag_T(21)
        I(f's_lshr_b32 s{s_t2}, s{s_c}, 3')
        flag_T((s_t2, 59))
    run_groups(GH, 26, 56, 14, {28: heavy_prep, 35: epiC, 36: a_flag, 43: epiG, 49: cg_flag, 50: w3_early})
    assert not eq
    while vq: vq.pop(0)()
    stamp(3)
    for f in epi_h(acc, s_bu, pk, 'bst'): f()
    E.wait(lgkm='all')
    I('s_branch L_p2')
    E.label('L_qq')
    E.restore(snap0); vq[:] = []
    GQ = [grpA(g, True) for g in range(28)] + [grpB(28+j, j, 7, accB) for j in range(14)]
    start_A(GQ)
    run_groups(GQ, 0, 42, 10, {16: mk_tag, 28: epiA(True, False), 33: w3_early, P['aflag_g']: a_flag})
    finish_B()

    E.label('L_p2')
    E.collapse('pre')
    I('s_barrier')
    for p in range(3, 3 + P['pre_w3']):
        for f in w3_pieces(p): f()
    poll_issue(vPl0, vPq, WS_F, 'pq')
    poll_issue(vPl1, vPh, WS_F, 'pe')
    V.put(acc, 64); V.put(accB, 32); V.put(wf, 64)
    for r_, n_ in ((vXo, 4), (vWq, 2), (vW1, 2), (vWa1, 2), (vXr, 4), (vWt, 2), (vWc, 1), (vQs, 1), (vFa, 1)): V.put(r_, n_)
    keep = (s_bu,)
    for s_ in p1s:
        if s_ not in keep: S.put(s_)
    for s_ in (sX, sWQ, sW1, sA1): S.put(s_, 4)
    S.put(sGP, 2)
    sMASK = [S.get(2, 2) for _ in range(16)]
    one4 = V.get(4, 4); vBM = V.get(8)
    for k in range(4): I(f'v_mov_b32 v{one4+k}, 0x3f803f80')
    I(f'v_lshrrev_b32 v{vT0}, 2, v{vLane}')
    I(f'v_lshlrev_b32 v{vT0}, 9, v{vT0}')
    I(f'v_and_b32 v{vT2}, 3, v{vLane}')
    I(f'v_lshl_add_u32 v{vT0}, v{vT2}, 4, v{vT0}')
    I(f's_mul_i32 s{s_t2}, s{s_w}, 6144')
    I(f's_add_u32 s{s_t0}, s{s_t2}, {VREG + 448}')
    I(f'v_add_u32 v{vT0}, s{s_t0}, v{vT0}')
    I('s_mov_b32 exec_hi, 0xffff')
    I(f'ds_write_b128 v{vT0}, {vr(one4,4)}', tag='ones')
    I('s_mov_b64 exec, -1')
    I(f'v_lshlrev_b32 v{vT0}, 2, v{vHi}')
    I(f'v_sub_u32 v{vT0}, v{vL31}, v{vT0}')
    for r in range(16):
        I(f'v_cmp_le_i32 {sr(sMASK[r],2)}, {8*(r>>2)+(r&3)}, v{vT0}')
    I(f'v_mov_b32 v{vT2}, 0xffff')
    I(f'v_mov_b32 v{vT3}, 0xffff0000')
    for k in range(8):
        I(f'v_cndmask_b32 v{vT0}, 0, v{vT2}, {sr(sMASK[2*k],2)}')
        I(f'v_cndmask_b32 v{vT1}, 0, v{vT3}, {sr(sMASK[2*k+1],2)}')
        I(f'v_or_b32 v{vBM+k}, v{vT0}, v{vT1}')
    E.wait(vm='pre')
    flag_T((s_bu, 32))
    V.put(pk, 32)
    stamp(4)
    poll_check(vPl0, vPq, WS_F, 'pq', sNeedQ)
    stamp(5)
    I(f's_mul_i32 s{s_t3}, s{s_c}, 448')
    I(f's_add_u32 s{s_t3}, s{s_t3}, {WS_QKV}')
    I(f's_mul_i32 s{s_t1}, s{s_T}, 86016')
    I(f's_add_u32 s{s_t1}, s{s_t1}, s{s_t3}')
    I(f's_add_u32 m0, s{s_w3a}, 12288')
    for st in range(2):
        I(f'buffer_load_dwordx4 v{vKo+st}, {sr(sWS,4)}, s{s_t1} offen offset:{st*1024} sc1 lds', tag='qk')
    s_tp = s_bu
    I(f's_mul_i32 s{s_tp}, s{s_w}, 3')
    I(f's_lshl_b32 s{s_t1}, s{s_i}, 2')
    I(f's_add_u32 s{s_tp}, s{s_tp}, s{s_t1}')
    I(f's_sub_u32 s{s_tp}, s{s_tp}, 8')
    for isv in range(2):
        if isv:
            I('s_mov_b32 exec_lo, 0x0fffffff')
            I('s_mov_b32 exec_hi, 0x0fffffff')
        for j in range(3):
            I(f's_add_i32 s{s_t0}, s{s_tp}, {j}')
            I(f's_max_i32 s{s_t0}, s{s_t0}, 0')
            I(f's_mul_i32 s{s_t0}, s{s_t0}, 86016')
            I(f's_add_u32 s{s_t0}, s{s_t0}, s{s_t3}')
            I(f's_add_u32 s{s_t1}, s{s_t0}, {7168 * (1 + isv)}')
            I(f's_add_u32 m0, s{s_t2}, {(VREG if isv else KREG) + j*2048}')
            for st in range(2):
                I(f'buffer_load_dwordx4 v{(vVo if isv else vKo)+st}, {sr(sWS,4)}, s{s_t1} offen offset:{st*1024} sc1 lds', tag='v' if isv else 'qk')
    I('s_mov_b64 exec, -1')
    poll_check(vPl1, vPh, WS_F, 'pe', sNeedE)
    for p in range(3 + P['pre_w3'], 6): vq.extend(w3_pieces(p))
    for p in range(0, 2): vq.extend(h_pieces(p))
    for _ in range(6): vq.pop(0)()
    E.wait(vm='qk')
    I(f's_cmp_ge_i32 s{s_tp}, 0')
    I('s_cbranch_scc1 L_valid')
    sn = E.snapshot()
    I(f'v_lshrrev_b32 v{vT0}, 2, v{vLane}')
    I(f'v_and_b32 v{vT1}, 3, v{vLane}')
    I(f'v_lshlrev_b32 v{vT2}, 2, v{vT1}')
    I(f'v_xor_b32 v{vT2}, 28, v{vT2}')
    I(f'v_lshlrev_b32 v{vT2}, 4, v{vT2}')
    I(f'v_lshl_add_u32 v{vT2}, v{vLane}, 9, v{vT2}')
    I(f's_add_u32 s{s_t0}, s{s_t2}, {KREG}')
    I(f'v_add_u32 v{vT2}, s{s_t0}, v{vT2}')
    I(f'v_add_u32 v{vT0}, s{s_tp}, v{vT0}')
    I(f'v_cmp_gt_i32 vcc, 0, v{vT0}')
    I(f's_and_b64 exec, vcc, 0xfff')
    I(f'ds_write_b128 v{vT2}, {vr(one4,4)}')
    I('s_mov_b64 exec, -1')
    E.restore(sn)
    E.label('L_valid')
    I('s_waitcnt lgkmcnt(0)'); E.lgkm = []
    I('s_barrier')
    stamp(6)
    KF = V.get(72, 4); Sx = V.get(48, 4); Mx = V.get(16, 4); NM = V.get(16, 4); O = V.get(16, 4); qf = V.get(8, 4)
    vM, vM2, vG = V.get(), V.get(), V.get()
    vOm = V.get(2)
    VF = 224
    t0 = E.t
    last = [E.t]
    events = []
    def tick():
        while events and E.t - t0 >= events[0][0]: events.pop(0)[1]()
        if vq and E.t - last[0] >= P['vpace']:
            last[0] = E.t; vq.pop(0)()
    def J(s, tag=None):
        I(s, tag); tick()
    def late_issue(): poll_issue(vPl1, vPh, WS_F, 'pl')
    def late_check():
        poll_check(vPl1, vPh, WS_F, 'pl', sNeedL)
        stamp(9)
        I(f'v_lshlrev_b32 v{vT0}, 2, v{vL31}')
        I(f's_lshl_b32 s{s_t0}, s{s_T}, 7')
        I(f's_add_u32 s{s_t0}, s{s_t0}, {WS_G}')
        I(f'buffer_load_dword v{vG}, v{vT0}, {sr(sWS,4)}, s{s_t0} offen sc1', tag='g')
        I(f's_lshl_b32 s{s_t0}, s{s_hb0}, 7')
        I(f's_add_u32 s{s_t0}, s{s_t0}, {WS_G + 0x2000}')
        I(f'buffer_load_dword v{vOm}, v{vT0}, {sr(sWS,4)}, s{s_t0} offen sc1', tag='g')
        I(f's_xor_b32 s{s_t0}, s{s_t0}, 128')
        I(f'buffer_load_dword v{vOm+1}, v{vT0}, {sr(sWS,4)}, s{s_t0} offen sc1', tag='g')
        for p in range(4, 14): vq.extend(h_pieces(p))
    events += [(P['latepoll_t'], late_issue), (P['latechk_t'], late_check)]
    def kread(dst, va, off, tag):
        for dl in range(2):
            for rho in range(2):
                J(f'ds_read_b64_tr_b16 {vr(dst+4*dl+2*rho,2)}, v{va+rho} offset:{off+dl*256}', tag=tag)
    order = [0, 8, 1, 2, 3, 4, 5, 6, 7]
    kread(qf, vQt, 0, 'q')
    for j in order[:2]: kread(KF+8*j, vKt, j*2048, f'k{j}')
    E.wait(lgkm='q')
    I(f'v_or_b32 v{qf+6}, v{qf+6}, v{vQpad}')
    vq.extend(w3_pieces(6))
    for p in range(2, 4): vq.extend(h_pieces(p))
    def sdst(idx):
        return Mx if idx == 1 else Sx + 16 * ([0, None, 1, 2, 0, 1, 2, 0, 1][idx])
    firstmax = [True]
    def maxops(b):
        r = []
        for k in range(0, 16, 4):
            if firstmax[0]:
                r += [f'v_max_f32 v{vM}, v{b}, v{b+1}', f'v_max_f32 v{vM2}, v{b+2}, v{b+3}']; firstmax[0] = False
            else:
                r += [f'v_max3_f32 v{vM}, v{b+k}, v{b+k+1}, v{vM}', f'v_max3_f32 v{vM2}, v{b+k+2}, v{b+k+3}, v{vM2}']
        return r
    fq = []
    for idx, j in enumerate(order):
        d = vr(sdst(idx), 16)
        if idx == 3:
            fq += [f'v_cndmask_b32 v{Mx+r}, v{Sx+r}, v{Mx+r}, {sr(sMASK[r],2)}' for r in range(16)]
        if idx == 4:
            while fq: J(fq.pop(0))
            fq += maxops(Mx)
        if idx >= 4: fq += maxops(sdst(idx - 2))
        if idx >= 5:
            pass
        E.wait(lgkm=f'k{j}')
        for dl in range(2):
            J(f'{MF} {d}, {vr(KF+8*j+4*dl,4)}, {vr(qf+4*dl,4)}, {"0" if dl == 0 else d}')
            if idx + 2 < 9:
                jn = order[idx+2]
                for rho in range(2):
                    J(f'ds_read_b64_tr_b16 {vr(KF+8*jn+4*dl+2*rho,2)}, v{vKt+rho} offset:{jn*2048+dl*256}', tag=f'k{jn}')
            n = (len(fq) + 1) // 2 if dl == 0 else len(fq)
            for _ in range(n): J(fq.pop(0))
    E.wait(vm='v')
    I('s_barrier')
    def vread(j, slot):
        for st in range(2):
            J(f'ds_read_b128 {ar(VF+8*slot+4*st,4)}, v{vVt} offset:{VREG-KREG+j*2048+st*1024}', tag=f'v{j}')
    vslot = {8: 0, 0: 1, 1: 2, 2: 3, 3: 0, 4: 1, 5: 2, 6: 3, 7: 0}
    for j in (8, 0, 1, 2): vread(j, vslot[j])
    for s_ in maxops(sdst(7)) + maxops(sdst(8)): J(s_)
    J(f'v_max_f32 v{vM}, v{vM}, v{vM2}')
    J(f'v_mov_b32 v{vM2}, v{vM}')
    J(f'v_permlane32_swap_b32 v{vM}, v{vM2}')
    J(f'v_max_f32 v{vM}, v{vM}, v{vM2}')
    J(f'v_sub_f32 v{NM}, 0, v{vM}')
    J(f'v_sub_f32 v{NM+1}, 0, v{vM}')
    for k in range(2, 16, 2): J(f'v_mov_b64 {vr(NM+k,2)}, {vr(NM,2)}')
    def qk2(j):
        d = vr(Sx + 16*(j % 3), 16)
        return [f'{MF} {d}, {vr(KF+8*j,4)}, {vr(qf,4)}, {vr(NM,16)}', f'{MF} {d}, {vr(KF+8*j+4,4)}, {vr(qf+4,4)}, {d}']
    firstpv = [True]
    def pv(j, preg, st):
        d = vr(O, 16)
        E.wait(lgkm=f'v{j}')
        J(f'{MF} {d}, {ar(VF+8*vslot[j]+4*st,4)}, {vr(preg,4)}, {"0" if firstpv[0] else d}')
        firstpv[0] = False
    mq = qk2(1) + qk2(2)
    J(mq.pop(0))
    pend = []
    for j in [8, 1, 2, 3, 4, 5, 6, 7]:
        b = Mx if j == 8 else Sx + 16*(j % 3)
        if j != 8 and j + 2 <= 7: nq = qk2(j + 2)
        else: nq = []
        for st in range(2):
            bb = b + 8*st
            if j == 8:
                for k in range(8): J(f'v_sub_f32 v{bb+k}, v{bb+k}, v{vM}')
                if mq: J(mq.pop(0))
            for k in range(8):
                J(f'v_exp_f32 v{bb+k}, v{bb+k}')
                if k == 1 and pend: pv(*pend.pop(0))
                if k == 5:
                    if pend: pv(*pend.pop(0))
                    elif mq: J(mq.pop(0))
                    elif nq: J(nq.pop(0))
            for k in range(4): J(f'v_cvt_pk_bf16_f32 v{bb+k}, v{bb+2*k}, v{bb+2*k+1}')
            if j == 8:
                for k in range(4):
                    J(f'v_bfi_b32 v{bb+4+k}, v{vBM+4*st+k}, 0, v{bb+k}')
                    J(f'v_and_b32 v{bb+k}, v{vBM+4*st+k}, v{bb+k}')
                pend += [(8, bb, st), (0, bb+4, st)]
            else:
                pend.append((j, bb, st))
        while mq: J(mq.pop(0))
        while nq: J(nq.pop(0))
        if j == 1: vread(3, vslot[3]); vread(4, vslot[4])
        elif j in (2, 3, 4): vread(j + 3, vslot[j + 3])
    while pend: pv(*pend.pop(0))
    while events: events.pop(0)[1]()
    I(f's_lshl_b32 s{s_t2}, s{s_T}, 15')
    I(f's_lshl_b32 s{s_t3}, s{s_c}, 11')
    I(f's_add_u32 s{s_t2}, s{s_t2}, s{s_t3}')
    I(f's_add_u32 s{s_t2}, s{s_t2}, {WS_O}')
    for _ in range(2):
        if vq: vq.pop(0)()
    I(f'v_cmp_eq_u32 vcc, 0, v{vHi}')
    I(f'v_mov_b32 v{vM}, v{O+12}')
    I(f'v_mov_b32 v{vM2}, v{O+12}')
    I(f'v_permlane32_swap_b32 v{vM}, v{vM2}')
    I(f'v_rcp_f32 v{vM2}, v{vM2}')
    E.wait(vm='g')
    I(f'v_mul_f32 v{vM2}, v{vM2}, v{vG}')
    I(f'v_cndmask_b32 v{vM}, 0, v{vM2}, vcc')
    for st in range(2):
        for r in range(8*st, 8*st+8): I(f'v_mul_f32 v{O+r}, v{O+r}, v{vM if r >= 12 else vM2}')
        for k in range(4): I(f'v_cvt_pk_bf16_f32 v{qf+4*st+k}, v{O+8*st+2*k}, v{O+8*st+2*k+1}')
        I(f'buffer_store_dwordx4 {vr(qf+4*st,4)}, v{vL16}, {sr(sWS,4)}, s{s_t2} offen offset:{st*1024} sc1', tag='ost')
    stamp(7)
    def o_flag():
        E.wait(vm='ost')
        I(f's_lshl_b32 s{s_t0}, s{s_T}, 4')
        I(f's_add_u32 s{s_t0}, s{s_t0}, s{s_c}')
        I(f's_lshl_b32 s{s_t0}, s{s_t0}, 2')
        I(f's_add_u32 s{s_t0}, s{s_t0}, {WS_FO}')
        flag_store(s_t0)
        stamp(8)
    I(f's_cmp_eq_u32 s{s_ns}, 7')
    I('s_cbranch_scc1 L_idle')
    snap_idle = E.snapshot()
    for r_, n_ in ((KF, 72), (Sx, 48), (Mx, 16), (NM, 16), (O, 16), (one4, 4), (vBM, 8)): V.put(r_, n_)

    ac3 = V.get(64, 4); bf = V.get(24, 4); rb = V.get(48, 4)
    def breads(k):
        _, va, off = w3_slot(k >> 1)
        return [f'ds_read_b64_tr_b16 {vr(bf+8*(k%3)+4*a+2*h,2)}, v{va+a} offset:{off+(k&1)*2048+h*1024}' for a in range(2) for h in range(2)]
    assert E.cnt.get('w3_13', 0) == 2
    sys.stderr.write(f'P2 est cycles {E.t - t0}, h pieces left {len(vq)}\n')
    hq = list(vq); vq[:] = []
    wq = []
    for k in (0, 1):
        E.wait(vm=f'w3_{k}')
        for r in breads(k): I(r, tag=f'b{k}')
    for k in range(36):
        if k == 28:
            for e in range(4):
                for r in range(16): I(f'v_mul_f32 v{ac3+16*e+r}, v{ac3+16*e+r}, v{vOm+(e&1)}')
        while E.cnt.get(f'h{k}', 0) < 2: hq.pop(0)()
        E.wait(vm=f'h{k}', lgkm=f'b{k}')
        if k & 1 and (k >> 1) + 7 < 18: wq.extend(w3_pieces((k >> 1) + 7))
        rd = []
        for m in range(4):
            a, b = m >> 1, m & 1
            d = vr(ac3+32*a+16*b, 16)
            I(f'{MF} {d}, {vr(bf+8*(k%3)+4*a,4)}, {areg(k,b)}, {"0" if k == 0 else d}')
            if m == 1 and k + 2 < 36:
                while E.cnt.get(f'w3_{k+2}', 0) < 2: wq.pop(0)()
                E.wait(vm=f'w3_{k+2}'); rd = breads(k + 2)
            for _ in range(2):
                if rd: I(rd.pop(0), tag=f'b{k+2}')
            q = (wq if (m & 1) == 0 else hq)
            if not q: q = hq if q is wq else wq
            if q: q.pop(0)()
        if k == P.get('oflag_k', 5): o_flag()
        if k == P['opoll_k']: poll_issue(vPl0, vPo, WS_FO, 'po')
        if k == P['ochk_k']:
            assert not hq
            stamp(10)
            poll_check(vPl0, vPo, WS_FO, 'po', sNeedO)
            stamp(11)
            for p in range(14, 18): hq.extend(h_pieces(p))
        if k == 8: I('s_barrier')
    stamp(12)
    vRw = V.get(3); vRr = V.get()
    for e in range(1, 4):
        I(f's_xor_b32 s{s_t0}, s{s_w}, {e}')
        I(f's_mul_i32 s{s_t0}, s{s_t0}, 12288')
        I(f's_add_u32 s{s_t0}, s{s_t0}, {RED + (e-1)*4096}')
        I(f'v_add_u32 v{vRw+e-1}, s{s_t0}, v{vL16}')
    I(f's_mul_i32 s{s_t0}, s{s_w}, 12288')
    I(f's_add_u32 s{s_t0}, s{s_t0}, {RED}')
    I(f'v_add_u32 v{vRr}, s{s_t0}, v{vL16}')
    for e in (1, 2, 3):
        for q in range(4):
            I(f'ds_write_b128 v{vRw+e-1}, {vr(ac3+16*e+4*q,4)} offset:{q*1024}', tag='red')
    I(f'v_mul_u32_u24 v{vT0}, 896, v{vL31}')
    I(f'v_lshl_add_u32 v{vT0}, v{vHi}, 4, v{vT0}')
    I(f's_mul_i32 s{s_t0}, s{s_hb0}, {32*896}')
    I(f's_lshl_b32 s{s_t1}, s{s_ns}, 7')
    I(f's_add_u32 s{s_t0}, s{s_t0}, s{s_t1}')
    I(f's_lshr_b32 s{s_t1}, s{s_w}, 1')
    I(f's_lshl_b32 s{s_t1}, s{s_t1}, 6')
    I(f's_add_u32 s{s_t0}, s{s_t0}, s{s_t1}')
    E.wait(lgkm='all')
    I('s_barrier')
    for q in range(4):
        for e in range(3):
            I(f'ds_read_b128 {vr(rb+16*e+4*q,4)}, v{vRr} offset:{e*4096+q*1024}', tag=f'rr{q}')
    for q in range(4):
        E.wait(lgkm=f'rr{q}')
        for r in range(4*q, 4*q+4):
            I(f'v_add_f32 v{ac3+r}, v{ac3+r}, v{rb+r}')
            I(f'v_add_f32 v{rb+16+r}, v{rb+16+r}, v{rb+32+r}')
        for r in range(4*q, 4*q+4):
            I(f'v_add_f32 v{ac3+r}, v{ac3+r}, v{rb+16+r}')
        for k in range(2*q, 2*q+2): I(f'v_cvt_pk_bf16_f32 v{bf+k}, v{ac3+2*k}, v{ac3+2*k+1}')
        if q & 1:
            p = q >> 1
            I(f'v_permlane32_swap_b32 v{bf+4*p}, v{bf+4*p+2}')
            I(f'v_permlane32_swap_b32 v{bf+4*p+1}, v{bf+4*p+3}')
            I(f'buffer_store_dwordx4 {vr(bf+4*p,4)}, v{vT0}, {sr(sOUT,4)}, s{s_t0} offen offset:{32*p}', tag='out')
    E.label('L_fin')
    if stamps:
        I('s_waitcnt vmcnt(0)')
        stamp(13)
        I(f's_lshl_b32 s{s_t0}, s2, 2')
        I(f's_add_u32 s{s_t0}, s{s_t0}, s{s_w}')
        I(f's_lshl_b32 s{s_t0}, s{s_t0}, 8')
        I(f's_add_u32 s{s_t0}, s{s_t0}, {WS_STAMP}')
        I(f'v_lshlrev_b32 v{vT0}, 2, v{vLane}')
        I(f'buffer_store_dword v{vStamp}, v{vT0}, {sr(sWS,4)}, s{s_t0} offen')
    E.label('L_end')
    I('s_endpgm')
    E.label('L_idle')
    E.restore(snap_idle)
    o_flag()
    I(f's_xor_b32 s{s_t0}, s2, 224')
    I(f's_or_b32 s{s_t0}, s{s_t0}, s{s_w}')
    I(f's_cmp_lg_u32 s{s_t0}, 0')
    I('s_cbranch_scc1 L_fin')
    I(f's_mov_b32 s{s_cnt}, 0')
    I(f's_movk_i32 s{s_t0}, {WS_FO}')
    E.label('L_epoch')
    for q in range(4):
        I(f'buffer_load_dwordx4 {vr(ac3+4*q,4)}, v{vL16}, {sr(sWS,4)}, s{s_t0} offen offset:{q*1024} sc1')
    I('s_waitcnt vmcnt(0)')
    for r in range(16): I(f'v_xor_b32 v{ac3+r}, v{ac3+r}, v{vTag}')
    for r in range(1, 16, 2):
        I(f'v_or3_b32 v{ac3}, v{ac3}, v{ac3+r}, v{ac3+min(r+1,15)}')
    I(f'v_cmp_ne_u32 vcc, 0, v{ac3}')
    I(f's_add_u32 s{s_cnt}, s{s_cnt}, 1')
    I(f's_and_b64 {sr(sP,2)}, vcc, vcc')
    I('s_cbranch_scc0 L_epoch_ok')
    I('s_sleep 8')
    I(f's_cmp_lt_u32 s{s_cnt}, {SPIN_MAX}')
    I('s_cbranch_scc1 L_epoch')
    E.label('L_epoch_ok')
    I(f's_mov_b32 s{s_t0}, 0')
    flag_store(s_t0)
    I('s_branch L_fin')

    head = open('cdna_kernels/' + NAME + '.s.ref').read().split('; Override')[0]
    out = head + f'; @launch grid=(256,1,1) block=(256,1,1) lds={LDS_BYTES}\n'
    out += f'''.amdgcn_target "amdgcn-amd-amdhsa--gfx950"
.text
.globl {NAME}_kernel
.p2align 8
.type {NAME}_kernel,@function
'''
    out += E.text()
    out += f'''.fill 12288, 4, 0xBF810000
.section .rodata,"a"
.p2align 6
.amdhsa_kernel {NAME}_kernel
  .amdhsa_next_free_vgpr 512
  .amdhsa_next_free_sgpr 102
  .amdhsa_accum_offset 256
  .amdhsa_group_segment_fixed_size 0
  .amdhsa_kernarg_size 80
  .amdhsa_user_sgpr_count 2
  .amdhsa_user_sgpr_kernarg_segment_ptr 1
  .amdhsa_system_sgpr_workgroup_id_x 1
.end_amdhsa_kernel
'''
    sys.stderr.write(f'instrs {E.nins} vgpr_hi {V.hi} sgpr_hi {S.hi}\n')
    return out

if __name__ == '__main__':
    st = 'stamps' in sys.argv[2:]
    kw = {a.split('=')[0]: int(a.split('=')[1]) for a in sys.argv[2:] if '=' in a}
    txt = generate(st, **kw)
    open(sys.argv[1], 'w').write(txt)
```

```python
import sys, math, struct
from asmlib import Emitter, Alloc

NAME = 'gated_mix__sliding_block__dense_activation_relu__prompt'
WS_F = 0x1000
WS_FO = 0x5000
WS_G = 0x6000
WS_STAMP = 0x10000
WS_QKV = 0x100000
WS_H = 0x700000
WS_O = 0xE00000
WS_SIZE = 0x1000000
XRING = 65536
KREG = 65536
VREG = KREG + 24576
RED = 65536
R2 = 114688
LDS_BYTES = 163840
OOB = 0x7F000000
SPIN_MAX = 20000
TAGINC = 0x9E3779B9

def f32bits(x): return struct.unpack('<I', struct.pack('<f', x))[0]

DEF = dict(aflag_g=36, vpace=72, pre_w3=2, latepoll_t=900, latechk_t=1700, opoll_k=18, ochk_k=22, epi_rate=6)

def generate(stamps=False, **kw):
    P = dict(DEF); P.update(kw)
    E = Emitter(); I = E.I
    V = Alloc(256, 1)
    S = Alloc(102, 3)
    def vr(i, n): return f'v[{i}:{i+n-1}]'
    def ar(i, n): return f'a[{i}:{i+n-1}]'
    def sr(i, n): return f's[{i}:{i+n-1}]'
    uid = [0]
    def L(p):
        uid[0] += 1; return f'L_{p}_{uid[0]}'
    MF = 'v_mfma_f32_32x32x16_bf16'

    sX, sWQ, sW1, sA1, sW2, sWO, sWS, sOUT = [S.get(4, 4) for _ in range(8)]
    kp = S.get(20, 4)
    s_w, s_i, s_c, s_mt, s_ns, s_T, s_t0, s_t1, s_t2, s_t3, s_cnt = [S.get() for _ in range(11)]
    p1s = [S.get() for _ in range(14)]
    s_kx, s_kw, s_xb, s_wa0, s_wa1, s_wb, s_m0x, s_m0w, s_u0, s_u1, s_rsA1, s_a1, s_bu, s_rho = p1s
    sP = S.get(2, 2); sGP = S.get(2, 2); sTM = S.get(2, 2)

    vStamp = V.get()
    def stamp(k):
        if not stamps: return
        I(f's_memrealtime {sr(sTM,2)}')
        E.wait(lgkm='all')
        I(f'v_writelane_b32 v{vStamp}, s{sTM}, {k}')

    E.raw(f'{NAME}_kernel:')
    I('s_cmp_ge_u32 s2, 256')
    I('s_cbranch_scc1 L_end')
    I(f's_load_dwordx16 {sr(kp,16)}, s[0:1], 0')
    I(f's_load_dwordx4 {sr(kp+16,4)}, s[0:1], 64')
    if stamps: I(f's_memrealtime {sr(sTM,2)}')
    vT0, vT1, vT2, vT3 = [V.get() for _ in range(4)]
    vLane, vHi, vL31, vCode = V.get(), V.get(), V.get(), V.get()
    I(f's_getpc_b64 {sr(sP,2)}')
    I(f's_lshr_b32 s{s_t1}, s2, 3')
    I(f'v_lshrrev_b32 v{vT0}, 6, v0')
    I(f'v_and_b32 v{vT1}, 3, v0')
    I(f'v_readfirstlane_b32 s{s_w}, v{vT0}')
    I(f'v_lshl_add_u32 v{vT1}, v{vT0}, 2, v{vT1}')
    I(f's_lshl_b32 s{s_t2}, s{s_t1}, 11')
    I(f'v_lshl_add_u32 v{vT1}, v{vT1}, 7, s{s_t2}')
    I(f'global_load_dword v{vCode}, v{vT1}, {sr(sP,2)}', tag='code')
    I(f'v_and_b32 v{vLane}, 63, v0')
    I(f's_and_b32 s{s_t0}, s2, 7')
    I(f's_and_b32 s{s_t2}, s{s_t1}, 3')
    I(f's_lshr_b32 s{s_ns}, s{s_t1}, 2')
    I(f's_lshl_b32 s{s_mt}, s{s_t0}, 2')
    I(f's_add_u32 s{s_mt}, s{s_mt}, s{s_t2}')
    I(f's_and_b32 s{s_i}, s{s_mt}, 15')
    I(f's_lshr_b32 s{s_t3}, s{s_t0}, 2')
    I(f's_lshl_b32 s{s_c}, s{s_t3}, 3')
    I(f's_add_u32 s{s_c}, s{s_c}, s{s_ns}')
    I(f's_lshl_b32 s{s_rho}, s{s_t2}, 1')
    I(f's_add_u32 s{s_rho}, s{s_rho}, s{s_ns}')
    I(f's_sub_u32 s{s_t0}, s{s_rho}, 7')
    I(f's_cmp_ge_u32 s{s_rho}, 7')
    I(f's_cselect_b32 s{s_rho}, s{s_t0}, s{s_rho}')
    I(f's_mov_b32 s{s_kx}, s{s_rho}')
    I(f's_mov_b32 s{s_kw}, s{s_rho}')
    I(f's_lshl_b32 s{s_T}, s{s_i}, 2')
    I(f's_add_u32 s{s_T}, s{s_T}, s{s_w}')
    def unit_of(dst, e):
        I(f's_and_b32 s{s_t0}, s{e}, 3')
        I(f's_mul_i32 s{s_t0}, s{s_t0}, 7')
        I(f's_lshr_b32 s{dst}, s{e}, 2')
        I(f's_add_u32 s{dst}, s{dst}, s{s_t0}')
    I(f's_sub_u32 s{s_t1}, s{s_c}, s{s_t3}')
    I(f's_sub_u32 s{s_t1}, s{s_t1}, 5')
    I(f's_add_u32 s{s_t2}, s{s_t3}, 9')
    I(f's_cmp_eq_u32 s{s_ns}, 7')
    I(f's_cselect_b32 s{s_t1}, s{s_t2}, s{s_t1}')
    unit_of(s_a1, s_t1)
    I(f's_add_u32 s{s_t2}, s{s_c}, 16')
    I(f's_cmp_lt_u32 s{s_c}, 5')
    I(f's_cselect_b32 s{s_a1}, s{s_t2}, s{s_a1}')
    I(f's_cselect_b32 s{s_rsA1}, 2688, 3584' if False else f's_movk_i32 s{s_t2}, 3584')
    I(f's_cselect_b32 s{s_rsA1}, 2688, s{s_t2}')
    vXo = V.get(4); vWq = V.get(2); vW1 = V.get(2); vWa1 = V.get(2); vWl = V.get(); vL8 = V.get()
    I(f'v_lshrrev_b32 v{vL8}, 3, v{vLane}')
    I(f'v_mul_u32_u24 v{vT2}, 896, v{vL8}')
    I(f'v_lshrrev_b32 v{vT0}, 4, v{vLane}')
    I(f'v_and_b32 v{vT3}, 7, v{vLane}')
    I(f'v_xor_b32 v{vT3}, v{vT3}, v{vT0}')
    I(f'v_lshl_add_u32 v{vXo}, v{vT3}, 4, v{vT2}')
    I(f'v_add_u32 v{vXo+2}, {2*(7168-1024)}, v{vXo}')
    I(f'v_xor_b32 v{vT3}, 4, v{vT3}')
    I(f'v_lshl_add_u32 v{vXo+1}, v{vT3}, 4, v{vT2}')
    I(f'v_add_u32 v{vXo+3}, {3*(7168-1024)}, v{vXo+1}')
    I(f'v_add_u32 v{vXo+1}, {7168-1024}, v{vXo+1}')
    I(f'v_and_b32 v{vT0}, 1, v{vT0}')
    I(f'v_lshlrev_b32 v{vT0}, 2, v{vT0}')
    I(f'v_and_b32 v{vT3}, 7, v{vLane}')
    I(f'v_xor_b32 v{vT3}, v{vT3}, v{vT0}')
    I(f'v_lshlrev_b32 v{vWl}, 4, v{vT3}')
    I(f'v_mul_u32_u24 v{vT2}, 2688, v{vL8}')
    I(f'v_add_u32 v{vWq}, v{vT2}, v{vWl}')
    I(f'v_add_u32 v{vWq+1}, {8*2688-1024}, v{vWq}')
    I(f'v_mul_u32_u24 v{vT2}, s{s_rsA1}, v{vL8}')
    I(f'v_add_u32 v{vWa1}, v{vT2}, v{vWl}')
    I(f's_lshl_b32 s{s_t2}, s{s_rsA1}, 3')
    I(f's_sub_u32 s{s_t2}, s{s_t2}, 1024')
    I(f'v_add_u32 v{vWa1+1}, s{s_t2}, v{vWa1}')
    I(f's_mul_i32 s{s_xb}, s{s_T}, {32*896}')
    I(f's_lshl_b32 s{s_m0w}, s{s_w}, 11')
    I(f's_lshl_b32 s{s_m0x}, s{s_w}, 12')
    I(f's_add_u32 s{s_m0x}, s{s_m0x}, {XRING}')
    I(f's_mul_i32 s{s_wa0}, s{s_w}, {16*2688}')
    I(f's_lshl_b32 s{s_t0}, s{s_c}, 7')
    I(f's_add_u32 s{s_wa0}, s{s_wa0}, s{s_t0}')
    I(f's_lshl_b32 s{s_rsA1}, s{s_rsA1}, 4')
    I(f's_mul_i32 s{s_wa1}, s{s_w}, s{s_rsA1}')
    I(f's_lshl_b32 s{s_t0}, s{s_a1}, 7')
    I(f's_add_u32 s{s_wa1}, s{s_wa1}, s{s_t0}')
    I(f's_lshl_b32 s{s_rsA1}, s{s_rsA1}, 2')
    E.wait(lgkm='all')
    def srd(d, p, nbytes):
        I(f's_mov_b32 s{d}, s{p}')
        I(f's_and_b32 s{d+1}, s{p+1}, 0xffff')
        I(f's_mov_b32 s{d+2}, {nbytes}')
        I(f's_mov_b32 s{d+3}, 0x00020000')
    srd(sX, kp+0, 2048*896)
    def adv(k):
        I(f's_add_u32 s{k}, s{k}, 1')
        I(f's_cmp_eq_u32 s{k}, 7')
        I(f's_cselect_b32 s{k}, 0, s{k}')
    def x_pieces(n):
        def mk(q):
            def f():
                I(f's_add_u32 m0, s{s_m0x}, {(n % 3) * 16384}')
                if q == 0:
                    I(f's_lshl_b32 s{s_u0}, s{s_kx}, 7')
                    I(f's_add_u32 s{s_u0}, s{s_u0}, s{s_xb}')
                I(f'buffer_load_dwordx4 v{vXo+q}, {sr(sX,4)}, s{s_u0} offen offset:{q*1024} lds', tag=f'c{n}')
                if q == 3: adv(s_kx)
            return f
        def g(q):
            def f():
                I(f'buffer_load_dwordx4 v{vXo+q}, {sr(sX,4)}, s{s_u0} offen offset:{q*1024} lds', tag=f'c{n}')
                if q == 3: adv(s_kx)
            return f
        return [mk(0), g(1), g(2), g(3)]
    def w_part(n, part, srdw, vo, rs, base, advance):
        def f0():
            I(f's_add_u32 m0, s{s_m0w}, {(n % 4) * 16384 + part * 8192}')
            I(f's_mul_i32 s{s_u1}, s{s_kw}, {rs}')
            I(f's_add_u32 s{s_u1}, s{s_u1}, s{base}')
            I(f'buffer_load_dwordx4 v{vo}, {sr(srdw,4)}, s{s_u1} offen lds', tag=f'c{n}')
        def f1():
            I(f'buffer_load_dwordx4 v{vo+1}, {sr(srdw,4)}, s{s_u1} offen offset:1024 lds', tag=f'c{n}')
            if advance: adv(s_kw)
        return [f0, f1]
    def w_pieces(n):
        if n < 7:
            return w_part(n, 0, sWQ, vWq, 64*2688, s_wa0, False) + w_part(n, 1, sA1, vWa1, f's{s_rsA1}', s_wa1, True)
        m = (n - 7) % 4
        r = w_part(n, 0, sW1, vW1, 64*3584, s_wb, True)
        if m < 3: r += w_part(n, 1, sW1, vW1, 64*3584, s_wb, True)
        return r
    for f in x_pieces(0): f()
    srd(sWQ, kp+2, 448*2688)
    srd(sW1, kp+8, 448*3584)
    I(f's_cmp_lt_u32 s{s_c}, 5')
    for q in range(3): I(f's_cselect_b32 s{sA1+q}, s{sWQ+q}, s{sW1+q}')
    I(f's_mov_b32 s{sA1+3}, 0x00020000')
    for f in w_pieces(0): f()
    for n in (1, 2):
        for f in x_pieces(n) + w_pieces(n): f()
    for f in w_pieces(3): f()
    srd(sWS, kp+18, WS_SIZE)
    vTag = V.get()
    I(f'v_mov_b32 v{vT0}, 0')
    I(f'buffer_load_dword v{vTag}, v{vT0}, {sr(sWS,4)}, 0 offen sc1', tag='c3')
    if stamps:
        I(f'v_mov_b32 v{vStamp}, 0')
        I(f'v_writelane_b32 v{vStamp}, s{sTM}, 15')
    stamp(0)
    srd(sWO, kp+4, 448*896)
    srd(sW2, kp+10, 1792*896)
    srd(sOUT, kp+14, 2048*896)
    I(f's_mov_b64 {sr(sGP,2)}, {sr(kp+12,2)}')
    I(f's_cmp_eq_u32 s{s_ns}, 7')
    I(f's_cselect_b32 s{sW2+2}, 0, s{sW2+2}')
    S.put(kp, 20)
    s_wc, s_ws, s_we, s_hc, s_hs, s_he, s_f1, s_f2, s_w3a, s_w3b, s_hb0 = [S.get() for _ in range(11)]
    sNeedQ, sNeedE, sNeedL, sNeedO = [S.get(2, 2) for _ in range(4)]

    I(f'v_lshrrev_b32 v{vHi}, 5, v{vLane}')
    I(f'v_and_b32 v{vL31}, 31, v{vLane}')
    vXr = V.get(4); vWt = V.get(2); vWc = V.get(); vQs = V.get(); vFa = V.get()
    vR, vNC, vL16 = V.get(), V.get(), V.get()
    I(f'v_bfe_u32 v{vT0}, v{vLane}, 1, 3')
    I(f'v_xor_b32 v{vT0}, v{vT0}, v{vHi}')
    I(f'v_lshlrev_b32 v{vT2}, 7, v{vL31}')
    I(f'v_add_u32 v{vT2}, s{s_m0x}, v{vT2}')
    for sg in range(4):
        I(f'v_xor_b32 v{vT3}, {2*sg}, v{vT0}')
        I(f'v_lshl_add_u32 v{vXr+sg}, v{vT3}, 4, v{vT2}')
    I(f'v_bfe_u32 v{vR}, v{vLane}, 2, 2')
    I(f'v_bfe_u32 v{vT0}, v{vLane}, 4, 1')
    I(f'v_lshlrev_b32 v{vNC}, 5, v{vT0}')
    I(f'v_and_b32 v{vT0}, 3, v{vLane}')
    I(f'v_lshl_add_u32 v{vNC}, v{vT0}, 3, v{vNC}')
    I(f'v_lshrrev_b32 v{vT0}, 1, v{vR}')
    I(f'v_lshl_add_u32 v{vT1}, v{vT0}, 6, v{vNC}')
    I(f'v_lshl_add_u32 v{vT1}, v{vR}, 7, v{vT1}')
    I(f'v_lshl_add_u32 v{vWt}, v{vHi}, 10, v{vT1}')
    I(f'v_xor_b32 v{vWt+1}, 64, v{vWt}')
    I(f's_and_b32 s{s_t0}, s{s_c}, 8')
    I(f's_lshl_b32 s{s_t0}, s{s_t0}, 3')
    I(f'v_xor_b32 v{vWc}, s{s_t0}, v{vWt}')
    vW3tA = V.get(2); vW3tB = V.get(2); vW3o = V.get(5)
    I(f's_lshl_b32 s{s_w3a}, s{s_w}, 14')
    I(f's_mul_i32 s{s_w3b}, s{s_w}, 12288')
    I(f's_add_u32 s{s_w3b}, s{s_w3b}, {R2}')
    I(f'v_lshl_add_u32 v{vT1}, v{vHi}, 9, v{vT1}')
    I(f's_lshr_b32 s{s_t0}, s{s_w}, 1')
    I(f's_lshl_b32 s{s_t0}, s{s_t0}, 6')
    I(f'v_xor_b32 v{vT1}, s{s_t0}, v{vT1}')
    I(f'v_add_u32 v{vW3tA}, s{s_w3a}, v{vT1}')
    I(f'v_add_u32 v{vW3tB}, s{s_w3b}, v{vT1}')
    I(f'v_xor_b32 v{vW3tA+1}, 64, v{vW3tA}')
    I(f'v_xor_b32 v{vW3tB+1}, 64, v{vW3tB}')
    I(f'v_mul_u32_u24 v{vT2}, 3584, v{vL8}')
    I(f'v_add_u32 v{vW1}, v{vT2}, v{vWl}')
    I(f'v_add_u32 v{vW1+1}, {8*3584-1024}, v{vW1}')
    I(f'v_mul_u32_u24 v{vT2}, 896, v{vL8}')
    I(f'v_add_u32 v{vW3o}, v{vT2}, v{vWl}')
    for q in range(1, 4): I(f'v_add_u32 v{vW3o+q}, {q*(7168-1024)}, v{vW3o}')
    vOOB = V.get()
    I(f'v_mov_b32 v{vOOB}, {OOB}')
    I(f'v_cmp_eq_u32 vcc, 0, v{vHi}')
    I(f'v_lshlrev_b32 v{vL16}, 4, v{vLane}')
    I(f'v_cndmask_b32 v{vW3o+4}, v{vOOB}, v{vW3o+3}, vcc')
    vQpad = V.get()
    I(f'v_mov_b32 v{vT0}, 0xf149')
    I(f'v_cndmask_b32 v{vQpad}, v{vT0}, 0, vcc')
    V.put(vWl); V.put(vL8)
    I(f's_add_u32 s{s_t1}, s{s_c}, 11')
    unit_of(s_bu, s_t1)
    I(f's_cmp_eq_u32 s{s_ns}, 7')
    I(f's_cselect_b32 s{s_t0}, 27, s{s_bu}')
    I(f's_lshl_b32 s{s_t0}, s{s_t0}, 7')
    I(f's_mul_i32 s{s_wb}, s{s_w}, {16*3584}')
    I(f's_add_u32 s{s_wb}, s{s_wb}, s{s_t0}')
    I(f'v_mul_u32_u24 v{vQs}, 21504, v{vHi}')
    I(f'v_lshl_add_u32 v{vQs}, v{vL31}, 4, v{vQs}')
    I(f's_add_u32 s{s_t0}, s{s_a1}, 32')
    I(f's_cmp_lt_u32 s{s_c}, 5')
    I(f's_cselect_b32 s{s_t0}, s{s_a1}, s{s_t0}')
    I(f's_sub_u32 s{s_t0}, s{s_t0}, s{s_c}')
    I(f'v_mul_u32_u24 v{vT0}, s{s_t0}, v{vLane}')
    I(f's_lshl_b32 s{s_t1}, s{s_T}, 6')
    I(f's_add_u32 s{s_t1}, s{s_t1}, s{s_c}')
    I(f'v_add_u32 v{vT0}, s{s_t1}, v{vT0}')
    I(f'v_lshlrev_b32 v{vFa}, 2, v{vT0}')
    vKo = V.get(2); vVo = V.get(2); vKt = V.get(2); vQt = V.get(2); vVt = V.get()
    I(f'v_mul_u32_u24 v{vT2}, 21504, v{vHi}')
    for st in range(2):
        I(f'v_lshlrev_b32 v{vT0}, 2, v{vHi}')
        I(f'v_xor_b32 v{vT0}, v{vT0}, v{vL31}')
        if st: I(f'v_xor_b32 v{vT0}, 8, v{vT0}')
        I(f'v_lshl_add_u32 v{vT3}, v{vT0}, 4, v{vT2}')
        I(f'v_cmp_gt_u32 vcc, 28, v{vT0}')
        if st: I(f'v_add_u32 v{vT3}, {43008-1024}, v{vT3}')
        I(f'v_cndmask_b32 v{vKo+st}, v{vOOB}, v{vT3}, vcc')
    I(f'v_mov_b32 v{vVo}, v{vQs}')
    I(f'v_add_u32 v{vVo+1}, {43008-1024}, v{vQs}')
    I(f'v_bfe_u32 v{vT0}, v{vLane}, 4, 1')
    I(f'v_and_b32 v{vT1}, 1, v{vLane}')
    I(f'v_lshl_add_u32 v{vT2}, v{vT0}, 1, v{vT1}')
    I(f'v_lshlrev_b32 v{vT3}, 9, v{vT2}')
    I(f'v_bfe_u32 v{vT0}, v{vLane}, 1, 1')
    I(f'v_lshl_add_u32 v{vT3}, v{vT0}, 3, v{vT3}')
    I(f'v_lshlrev_b32 v{vT2}, 2, v{vT2}')
    I(f'v_lshl_add_u32 v{vT0}, v{vHi}, 3, v{vR}')
    I(f'v_xor_b32 v{vT0}, v{vT0}, v{vT2}')
    I(f'v_lshl_add_u32 v{vT3}, v{vT0}, 4, v{vT3}')
    I(f's_add_u32 s{s_t0}, s{s_m0w}, {KREG}')
    I(f's_add_u32 s{s_t1}, s{s_w3a}, 12288')
    I(f'v_add_u32 v{vKt}, s{s_t0}, v{vT3}')
    I(f'v_add_u32 v{vQt}, s{s_t1}, v{vT3}')
    I(f'v_xor_b32 v{vKt+1}, 64, v{vKt}')
    I(f'v_xor_b32 v{vQt+1}, 64, v{vQt}')
    I(f'v_add_u32 v{vVt}, s{s_t0}, v{vL16}')
    V.put(vR); V.put(vNC)
    vH = V.get(2); vO = V.get(2)
    I(f's_and_b32 s{s_t0}, s{s_w}, 1')
    I(f's_lshl_b32 s{s_hb0}, s{s_mt}, 1')
    I(f's_add_u32 s{s_hb0}, s{s_hb0}, s{s_t0}')
    I(f's_xor_b32 s{s_t1}, s{s_hb0}, 1')
    for b, sb in ((0, s_hb0), (1, s_t1)):
        I(f's_mul_i32 s{s_t2}, s{sb}, {112*1024}')
        I(f's_cmp_eq_u32 s{s_ns}, 7')
        I(f's_cselect_b32 s{s_t2}, {OOB}, s{s_t2}')
        I(f'v_add_u32 v{vH+b}, s{s_t2}, v{vL16}')
        I(f's_lshl_b32 s{s_t2}, s{sb}, 15')
        I(f'v_add_u32 v{vO+b}, s{s_t2}, v{vL16}')
    I(f's_add_u32 s{s_f1}, s{s_mt}, s{s_ns}')
    I(f's_and_b32 s{s_f1}, s{s_f1}, 3')
    I(f's_and_b32 s{s_t0}, s{s_mt}, 3')
    I(f's_mul_i32 s{s_t0}, s{s_t0}, 5')
    I(f's_lshr_b32 s{s_t0}, s{s_t0}, 1')
    I(f's_mul_i32 s{s_t1}, s{s_ns}, 3')
    I(f's_lshr_b32 s{s_t1}, s{s_t1}, 1')
    I(f's_add_u32 s{s_f2}, s{s_t0}, s{s_t1}')
    I(f's_sub_u32 s{s_t0}, s{s_f2}, 10')
    I(f's_cmp_ge_u32 s{s_f2}, 10')
    I(f's_cselect_b32 s{s_f2}, s{s_t0}, s{s_f2}')
    I(f's_mul_i32 s{s_ws}, s{s_w}, {448*896}')
    I(f's_lshl_b32 s{s_t0}, s{s_ns}, 7')
    I(f's_add_u32 s{s_ws}, s{s_ws}, s{s_t0}')
    I(f's_add_u32 s{s_we}, s{s_ws}, {4*32*896}')
    I(f's_mul_i32 s{s_wc}, s{s_f1}, {32*896}')
    I(f's_add_u32 s{s_wc}, s{s_wc}, s{s_ws}')
    I(f's_mul_i32 s{s_hs}, s{s_w}, {28*1024}')
    I(f's_add_u32 s{s_hs}, s{s_hs}, {WS_H}')
    I(f's_add_u32 s{s_he}, s{s_hs}, 8192')
    I(f's_lshl_b32 s{s_hc}, s{s_f1}, 11')
    I(f's_add_u32 s{s_hc}, s{s_hc}, s{s_hs}')
    vPq, vPh, vPo, vPl0, vPl1 = [V.get() for _ in range(5)]
    I(f'v_lshrrev_b32 v{vT0}, 4, v{vLane}')
    I(f'v_and_b32 v{vT1}, 15, v{vLane}')
    I(f's_mul_i32 s{s_t0}, s{s_w}, 3')
    I(f's_lshl_b32 s{s_t1}, s{s_i}, 2')
    I(f's_add_u32 s{s_t0}, s{s_t0}, s{s_t1}')
    I(f's_sub_u32 s{s_t0}, s{s_t0}, 8')
    I(f'v_add_u32 v{vT2}, s{s_t0}, v{vT0}')
    I(f'v_max_i32 v{vT2}, 0, v{vT2}')
    I(f'v_lshlrev_b32 v{vT2}, 6, v{vT2}')
    I(f'v_add_u32 v{vT2}, 7, v{vT2}')
    I(f's_lshl_b32 s{s_t1}, s{s_T}, 6')
    I(f'v_mov_b32 v{vT3}, s{s_t1}')
    I(f'v_cmp_eq_u32 vcc, 3, v{vT0}')
    I(f'v_cndmask_b32 v{vT2}, v{vT2}, v{vT3}, vcc')
    I(f'v_add_u32 v{vT2}, v{vT2}, v{vT1}')
    I(f'v_lshlrev_b32 v{vPq}, 2, v{vT2}')
    I(f's_lshl_b32 s{s_t0}, s{s_mt}, 1')
    I(f'v_add_u32 v{vT2}, s{s_t0}, v{vT0}')
    I(f'v_lshl_add_u32 v{vPo}, v{vT2}, 4, v{vT1}')
    I(f'v_lshlrev_b32 v{vPo}, 2, v{vPo}')
    I(f'v_lshlrev_b32 v{vT2}, 6, v{vT2}')
    I(f'v_cmp_eq_u32 vcc, 0, v{vHi}')
    I(f's_mul_i32 s{s_t0}, s{s_w}, 7')
    I(f's_add_u32 s{s_t0}, s{s_t0}, 32')
    I(f'v_cndmask_b32 v{vT2}, v{vT3}, v{vT2}, vcc')
    I(f'v_cndmask_b32 v{vPo}, v{vOOB}, v{vPo}, vcc')
    I(f'v_add_u32 v{vT3}, s{s_t0}, v{vT1}')
    I(f'v_cmp_gt_u32 vcc, 8, v{vT1}')
    I(f'v_cndmask_b32 v{vT3}, 21, v{vT3}, vcc')
    I(f'v_add_u32 v{vT2}, v{vT2}, v{vT3}')
    I(f'v_lshlrev_b32 v{vPh}, 2, v{vT2}')
    I(f's_mul_i32 s{s_t0}, s{s_c}, 28')
    I(f's_lshr_b32 s{s_t1}, s{s_t0}, 6')
    I(f's_lshl_b32 s{s_t1}, 1, s{s_t1}')
    I(f's_add_u32 s{s_t0}, s{s_t0}, 27')
    I(f's_lshr_b32 s{s_t0}, s{s_t0}, 6')
    I(f's_bitset1_b32 s{s_t1}, s{s_t0}')
    I(f's_mul_i32 s{s_t0}, s{s_t1}, 129')
    I(f's_mul_i32 s{sNeedQ}, s{s_t0}, 0x10001')
    I(f's_lshl_b32 s{s_t1}, s{s_t1}, 16')
    I(f's_or_b32 s{sNeedQ+1}, s{s_t0}, s{s_t1}')
    I(f's_cmp_eq_u32 s{s_w}, 3')
    I(f's_mov_b32 s{s_t0}, 0x017c017c')
    I(f's_cselect_b32 s{sNeedL}, 0x01fc01fc, s{s_t0}')
    I(f's_cmp_eq_u32 s{s_ns}, 7')
    I(f's_cselect_b32 s{sNeedL}, 0, s{sNeedL}')
    I(f's_cselect_b32 s{sNeedE}, 0, 0x00030003')
    I(f's_mov_b32 s{sNeedL+1}, 0x100')
    I(f's_mov_b32 s{sNeedE+1}, 0')
    I(f's_lshl_b32 s{s_t0}, s{s_w}, 2')
    I(f's_lshl_b32 s{sNeedO}, 0x000f000f, s{s_t0}')
    I(f's_mov_b32 s{sNeedO+1}, 0')

    def flag_store(soff):
        I(f'v_mov_b32 v{vT0}, 0')
        I('s_mov_b64 exec, 1')
        I(f'buffer_store_dword v{vTag}, v{vT0}, {sr(sWS,4)}, s{soff} offen sc1', tag='flagst')
        I('s_mov_b64 exec, -1')
    def flag_T(idx):
        I(f's_lshl_b32 s{s_t0}, s{s_T}, 8')
        if isinstance(idx, int):
            I(f's_add_u32 s{s_t0}, s{s_t0}, {WS_F + 4*idx}')
        else:
            sg_, add = idx
            I(f's_lshl_b32 s{s_t1}, s{sg_}, 2')
            I(f's_add_u32 s{s_t0}, s{s_t0}, s{s_t1}')
            I(f's_add_u32 s{s_t0}, s{s_t0}, {WS_F + 4*add}')
        flag_store(s_t0)

    def poll_issue(dst, vaddr, base, tag):
        I(f's_movk_i32 s{s_cnt}, {base}')
        I(f'buffer_load_dword v{dst}, v{vaddr}, {sr(sWS,4)}, s{s_cnt} offen sc1', tag=tag)
    def poll_check(dst, vaddr, base, tag, need):
        lab = L('poll'); done = L('pollok')
        E.wait(vm=tag)
        I(f'v_cmp_ne_u32 vcc, v{dst}, v{vTag}')
        I(f's_and_b64 {sr(sP,2)}, vcc, {sr(need,2)}')
        I(f's_cbranch_scc0 {done}')
        sn = E.snapshot()
        I(f's_mov_b32 s{s_cnt}, 0')
        I(f's_movk_i32 s{s_t0}, {base}')
        E.label(lab)
        I(f'buffer_load_dword v{dst}, v{vaddr}, {sr(sWS,4)}, s{s_t0} offen sc1')
        I('s_waitcnt vmcnt(0)')
        I(f'v_cmp_ne_u32 vcc, v{dst}, v{vTag}')
        I(f's_add_u32 s{s_cnt}, s{s_cnt}, 1')
        I(f's_and_b64 {sr(sP,2)}, vcc, {sr(need,2)}')
        I(f's_cbranch_scc0 {done}')
        I(f's_cmp_lt_u32 s{s_cnt}, {SPIN_MAX}')
        I(f's_cbranch_scc1 {lab}')
        E.restore(sn)
        E.label(done)

    def w3_slot(p):
        sl = p % 7
        return (s_w3b, vW3tB, sl * 4096) if sl < 3 else (s_w3a, vW3tA, (sl - 3) * 4096)
    def stream_adv(cur, st, en, step, p, nxt):
        if p in (3, 13): nxt(p)
        elif p < 17:
            I(f's_add_u32 s{cur}, s{cur}, {step}')
            I(f's_cmp_eq_u32 s{cur}, s{en}')
            I(f's_cselect_b32 s{cur}, s{st}, s{cur}')
    def w_next(p):
        if p == 3:
            I(f's_mov_b32 s{s_ws}, s{s_we}')
            I(f's_add_u32 s{s_we}, s{s_ws}, {10*32*896}')
            I(f's_mul_i32 s{s_wc}, s{s_f2}, {32*896}')
        else:
            I(f's_mul_i32 s{s_ws}, s{s_w}, {112*896}')
            I(f's_lshl_b32 s{s_wc}, s{s_ns}, 7')
            I(f's_add_u32 s{s_ws}, s{s_ws}, s{s_wc}')
            I(f's_add_u32 s{s_we}, s{s_ws}, {112*896}')
            I(f's_mul_i32 s{s_wc}, s{s_f1}, {28*896}')
        I(f's_add_u32 s{s_wc}, s{s_wc}, s{s_ws}')
    def h_next(p):
        if p == 3:
            I(f's_mov_b32 s{s_hs}, s{s_he}')
            I(f's_add_u32 s{s_he}, s{s_hs}, 20480')
            I(f's_lshl_b32 s{s_hc}, s{s_f2}, 11')
        else:
            I(f's_lshl_b32 s{s_hs}, s{s_w}, 13')
            I(f's_add_u32 s{s_hs}, s{s_hs}, {WS_O}')
            I(f's_add_u32 s{s_he}, s{s_hs}, 8192')
            I(f's_lshl_b32 s{s_hc}, s{s_f1}, 11')
        I(f's_add_u32 s{s_hc}, s{s_hc}, s{s_hs}')
    def w3_pieces(p):
        sb, _, off = w3_slot(p)
        sd = sW2 if p < 14 else sWO
        def mk(q):
            def f():
                if q == 0: I(f's_add_u32 m0, s{sb}, {off}')
                vo = vW3o + (4 if (q == 3 and p >= 14) else q)
                I(f'buffer_load_dwordx4 v{vo}, {sr(sd,4)}, s{s_wc} offen offset:{q*1024} lds', tag=f'w3_{2*p+q//2}')
                if q == 3: stream_adv(s_wc, s_ws, s_we, (32 if p < 14 else 28) * 896, p, w_next)
            return f
        return [mk(q) for q in range(4)]
    def areg(k, b):
        return ar(8*(k % 28) + 4*b, 4)
    def h_pieces(p):
        vo = vH if p < 14 else vO
        def mk(q):
            def f():
                s_, b = q >> 1, q & 1
                I(f'buffer_load_dwordx4 {areg(2*p+s_, b)}, v{vo+b}, {sr(sWS,4)}, s{s_hc} offen offset:{s_*1024} sc1', tag=f'h{2*p+s_}')
                if q == 3: stream_adv(s_hc, s_hs, s_he, 2048, p, h_next)
            return f
        return [mk(q) for q in range(4)]

    acc = V.get(64, 4); accB = V.get(32, 4); wf = V.get(64, 4); pk = V.get(32, 4)
    def trd(g, idx, va, off):
        return (f'ds_read_b64_tr_b16 {vr(wf+16*(g%4)+2*idx,2)}, v{va} offset:{off}')
    def grpA(g, qq):
        n, sg = g >> 2, g & 3
        rd = [f'ds_read_b128 {ar(4*g,4)}, v{vXr+sg} offset:{(n%3)*16384}']
        mf = []
        for t in range(4):
            for h in range(2):
                rd.append(trd(g, 2*t+h, vWt + (t & 1), (n%4)*16384 + (t>>1)*8192 + sg*2048 + h*512))
            d = vr(acc+16*t, 16); w = vr(wf+16*(g%4)+4*t, 4); x = ar(4*g, 4)
            a, b = (x, w) if (t < 2 or qq) else (w, x)
            mf.append(f'{MF} {d}, {a}, {b}, {"0" if g == 0 else d}')
        return dict(rd=rd, mf=mf, ch=n)
    def grpB(g, j, ch0, ac):
        n = ch0 + (j >> 2); rd = []; mf = []
        for u in range(2):
            ss = 2*j + u; m, sg = ss >> 2, ss & 3
            for t in range(2):
                for h in range(2):
                    rd.append(trd(g, 4*u+2*t+h, vWt + t, (n%4)*16384 + (m&1)*8192 + sg*2048 + h*512))
                d = vr(ac+16*t, 16)
                mf.append(f'{MF} {d}, {vr(wf+16*(g%4)+8*u+4*t,4)}, {ar(4*ss,4)}, {"0" if ss == 0 else d}')
        return dict(rd=rd, mf=mf, ch=n)
    def grpC(g, m, ac):
        n = 7 + (m >> 1); rd = []; mf = []
        for sg in range(4):
            for h in range(2):
                rd.append(trd(g, 2*sg+h, vWc, (n%4)*16384 + (m&1)*8192 + sg*2048 + h*512))
            d = vr(ac, 16)
            mf.append(f'{MF} {d}, {vr(wf+16*(g%4)+4*sg,4)}, {ar(16*m+4*sg,4)}, {"0" if m == 0 and sg == 0 else d}')
        return dict(rd=rd, mf=mf, ch=n)
    def grpG(g, m, ac):
        d = vr(ac, 16)
        return dict(rd=[], ch=10, vm='gf', mf=[f'{MF} {d}, {ar(112+16*m+4*sg,4)}, {ar(16*m+4*sg,4)}, {"0" if m == 0 and sg == 0 else d}' for sg in range(4)])

    vq = []
    eq = []
    def run_groups(G, g0, g1, lastch, hooks):
        for g in range(g0, g1):
            if g in hooks: hooks[g]()
            cur = G[g]
            nxt = G[g+2] if g + 2 < len(G) else None
            rd = list(nxt['rd']) if nxt else []
            bound = nxt is not None and nxt['ch'] != G[g+1]['ch']
            E.wait(lgkm=f'r{g}', vm=cur.get('vm'))
            per = [3, 2, 2, 2] if not bound else [0, 3, 3, 3]
            for m in range(4):
                I(cur['mf'][m])
                if bound and m == 1:
                    n1 = nxt['ch']
                    E.wait(vm=f'c{n1}', lgkm='all')
                    I('s_barrier')
                    if n1 + 2 < 7: vq.extend(x_pieces(n1 + 2))
                    if n1 + 3 <= lastch: vq.extend(w_pieces(n1 + 3))
                for _ in range(per[m]):
                    if rd: I(rd.pop(0), tag=f'r{g+2}')
                if vq and (m & 1): vq.pop(0)()
                for _ in range(P['epi_rate']):
                    if eq: eq.pop(0)()
            assert not rd

    def q_u(s): return lambda: I(s)
    def epi_q(ac, u_sgpr, pkb, tag):
        def base():
            I(f's_mul_i32 s{s_t2}, s{s_T}, 86016')
            I(f's_lshl_b32 s{s_t3}, s{u_sgpr}, 10')
            I(f's_add_u32 s{s_t2}, s{s_t2}, s{s_t3}')
            I(f's_add_u32 s{s_t2}, s{s_t2}, {WS_QKV}')
            I(f's_add_u32 s{s_t3}, s{s_t2}, 43008')
        r = [base]
        for t in range(2):
            for st in range(2):
                d = pkb + 8*t + 4*st
                for k in range(4):
                    s0 = ac + 16*t + 8*st + 2*k
                    r.append(q_u(f'v_cvt_pk_bf16_f32 v{d+k}, v{s0}, v{s0+1}'))
                r.append(lambda d=d, st=st, t=t: I(f'buffer_store_dwordx4 {vr(d,4)}, v{vQs}, {sr(sWS,4)}, s{s_t3 if st else s_t2} offen offset:{t*512} sc1', tag=tag))
        return r
    def epi_h(ac, u_sgpr, pkb, tag, nt=2, half=False):
        def base():
            I(f's_mul_i32 s{s_t2}, s{s_T}, {112*1024}')
            if half:
                I(f's_and_b32 s{s_t3}, s{s_c}, 8')
                I(f's_lshl_b32 s{s_t3}, s{s_t3}, 8')
                I(f's_add_u32 s{s_t3}, s{s_t3}, {27*4096}')
            else:
                I(f's_lshl_b32 s{s_t3}, s{u_sgpr}, 12')
            I(f's_add_u32 s{s_t2}, s{s_t2}, s{s_t3}')
            I(f's_add_u32 s{s_t2}, s{s_t2}, {WS_H}')
        r = [base]
        for f in range(2*nt):
            d = pkb + 4*f
            for k in range(4):
                s0 = ac + 8*f + 2*k
                r.append(q_u(f'v_cvt_pk_bf16_f32 v{d+k}, v{s0}, v{s0+1}'))
            for k in range(4):
                r.append(q_u(f'v_pk_max_i16 v{d+k}, v{d+k}, 0'))
            r.append(lambda d=d, f=f: I(f'buffer_store_dwordx4 {vr(d,4)}, v{vL16}, {sr(sWS,4)}, s{s_t2} offen offset:{f*1024} sc1', tag=tag))
        return r
    cscale = hex(f32bits(math.log2(math.e) / math.sqrt(28.0)))
    def scale_q(cond):
        lab = L('nosc')
        if cond:
            I(f's_cmp_ge_u32 s{s_c}, 7')
            I(f's_cbranch_scc1 {lab}')
        I(f's_mov_b32 s{s_t0}, {cscale}')
        for r in range(32): I(f'v_mul_f32 v{acc+r}, s{s_t0}, v{acc+r}')
        if cond:
            E.label(lab)
            E.hist = E.hist_save
    def a_flag():
        E.wait(vm='ast')
        I(f's_movk_i32 s{s_t0}, {WS_F}')
        I('s_mov_b64 exec, 3')
        I(f'buffer_store_dword v{vTag}, v{vFa}, {sr(sWS,4)}, s{s_t0} offen sc1', tag='flagst')
        I('s_mov_b64 exec, -1')
        stamp(2)
    def mk_tag():
        I(f'v_add_u32 v{vTag}, {hex(TAGINC)}, v{vTag}')
    def start_A(G):
        E.wait(vm='c0')
        stamp(16)
        I('s_barrier')
        for g in (0, 1):
            for r in G[g]['rd']: I(r, tag=f'r{g}')
    def epiA(qq, cond):
        def f():
            stamp(1)
            if cond is not None:
                def sc():
                    E.hist_save = list(E.hist)
                    scale_q(cond)
                eq.append(sc)
            eq.extend(epi_q(acc, s_c, pk, 'ast'))
            eq.extend(epi_q(acc+32, s_a1, pk+16, 'ast') if qq else epi_h(acc+32, s_a1, pk+16, 'ast'))
        return f
    def w3_early():
        for p in range(3): vq.extend(w3_pieces(p))
    def finish_B():
        assert not eq
        while vq: vq.pop(0)()
        stamp(3)
        for f in epi_h(accB, s_bu, pk, 'bst'): f()
        E.wait(lgkm='all')

    I(f's_cmp_lt_u32 s{s_c}, 5')
    I('s_cbranch_scc1 L_qq')
    snap0 = E.snapshot()
    GA = [grpA(g, False) for g in range(28)]
    GL = GA + [grpB(28+j, j, 7, accB) for j in range(14)]
    start_A(GL)
    run_groups(GL, 0, 26, 10, {16: mk_tag})
    I(f's_cmp_eq_u32 s{s_ns}, 7')
    I('s_cbranch_scc1 L_heavy')
    snap1 = E.snapshot(); vq1 = list(vq)
    run_groups(GL, 26, 42, 10, {28: epiA(False, True), 33: w3_early, P['aflag_g']: a_flag})
    finish_B()
    I('s_branch L_p2')
    E.label('L_heavy')
    E.restore(snap1); vq[:] = vq1
    accG = accB + 16
    GH = GA + [grpC(28+m, m, accB) for m in range(7)] + [grpG(35+m, m, accG) for m in range(7)] + [grpB(42+j, j, 11, acc) for j in range(14)]
    def heavy_prep():
        epiA(False, None)()
        def rebase():
            I(f's_lshl_b32 s{s_t0}, s{s_bu}, 7')
            I(f's_mul_i32 s{s_wb}, s{s_w}, {16*3584}')
            I(f's_add_u32 s{s_wb}, s{s_wb}, s{s_t0}')
        assert not vq
        rebase()
        srd(sX, sGP, 896)
        I(f'v_lshlrev_b32 v{vT1}, 4, v{vHi}')
        for m in range(7):
            I(f's_lshl_b32 s{s_u0}, s{s_kx}, 7')
            for sg in range(4):
                I(f'buffer_load_dwordx4 {ar(112+16*m+4*sg,4)}, v{vT1}, {sr(sX,4)}, s{s_u0} offen offset:{32*sg}', tag='gf')
            adv(s_kx)
    def epiC(): eq.extend(epi_h(accB, None, pk, 'cst', nt=1, half=True))
    def epiG():
        def g():
            I(f'v_cvt_pk_bf16_f32 v{vT0}, v{accG}, v{accG}')
            I(f'v_and_b32 v{vT0}, 0xffff0000, v{vT0}')
            I(f'v_mul_f32 v{vT0}, {hex(f32bits(-math.log2(math.e)))}, v{vT0}')
            I(f'v_exp_f32 v{vT0}, v{vT0}')
            I(f'v_add_f32 v{vT0}, 1.0, v{vT0}')
            I(f'v_rcp_f32 v{vT0}, v{vT0}')
            I(f'v_cvt_pk_bf16_f32 v{vT0}, v{vT0}, v{vT0}')
            I(f'v_and_b32 v{vT2}, 0xffff0000, v{vT0}')
            I(f'v_sub_f32 v{vT0}, 1.0, v{vT2}')
            I(f'v_cvt_pk_bf16_f32 v{vT0}, v{vT0}, v{vT0}')
            I(f'v_and_b32 v{vT3}, 0xffff0000, v{vT0}')
            I(f'v_cmp_eq_u32 vcc, 0, v{vHi}')
            I(f'v_lshlrev_b32 v{vT0}, 13, v{vHi}')
            I(f'v_lshl_add_u32 v{vT0}, v{vL31}, 2, v{vT0}')
            I(f'v_cndmask_b32 v{vT2}, v{vT3}, v{vT2}, vcc')
            I(f's_lshl_b32 s{s_t2}, s{s_T}, 7')
            I(f's_add_u32 s{s_t2}, s{s_t2}, {WS_G}')
            I(f'buffer_store_dword v{vT2}, v{vT0}, {sr(sWS,4)}, s{s_t2} offen sc1', tag='gst')
        eq.append(g)
    def cg_flag():
        E.wait(vm='gst')
        flag_T(21)
        I(f's_lshr_b32 s{s_t2}, s{s_c}, 3')
        flag_T((s_t2, 59))
    run_groups(GH, 26, 56, 14, {28: heavy_prep, 35: epiC, 36: a_flag, 43: epiG, 49: cg_flag, 50: w3_early})
    assert not eq
    while vq: vq.pop(0)()
    stamp(3)
    for f in epi_h(acc, s_bu, pk, 'bst'): f()
    E.wait(lgkm='all')
    I('s_branch L_p2')
    E.label('L_qq')
    E.restore(snap0); vq[:] = []
    GQ = [grpA(g, True) for g in range(28)] + [grpB(28+j, j, 7, accB) for j in range(14)]
    start_A(GQ)
    run_groups(GQ, 0, 42, 10, {16: mk_tag, 28: epiA(True, False), 33: w3_early, P['aflag_g']: a_flag})
    finish_B()

    E.label('L_p2')
    E.collapse('pre')
    I('s_barrier')
    for p in range(3, 3 + P['pre_w3']):
        for f in w3_pieces(p): f()
    poll_issue(vPl0, vPq, WS_F, 'pq')
    poll_issue(vPl1, vPh, WS_F, 'pe')
    V.put(acc, 64); V.put(accB, 32); V.put(wf, 64)
    for r_, n_ in ((vXo, 4), (vWq, 2), (vW1, 2), (vWa1, 2), (vXr, 4), (vWt, 2), (vWc, 1), (vQs, 1), (vFa, 1)): V.put(r_, n_)
    keep = (s_bu,)
    for s_ in p1s:
        if s_ not in keep: S.put(s_)
    for s_ in (sX, sWQ, sW1, sA1): S.put(s_, 4)
    S.put(sGP, 2)
    sMASK = [S.get(2, 2) for _ in range(16)]
    one4 = V.get(4, 4); vBM = V.get(8)
    for k in range(4): I(f'v_mov_b32 v{one4+k}, 0x3f803f80')
    I(f'v_lshrrev_b32 v{vT0}, 2, v{vLane}')
    I(f'v_lshlrev_b32 v{vT0}, 9, v{vT0}')
    I(f'v_and_b32 v{vT2}, 3, v{vLane}')
    I(f'v_lshl_add_u32 v{vT0}, v{vT2}, 4, v{vT0}')
    I(f's_mul_i32 s{s_t2}, s{s_w}, 6144')
    I(f's_add_u32 s{s_t0}, s{s_t2}, {VREG + 448}')
    I(f'v_add_u32 v{vT0}, s{s_t0}, v{vT0}')
    I('s_mov_b32 exec_hi, 0xffff')
    I(f'ds_write_b128 v{vT0}, {vr(one4,4)}', tag='ones')
    I('s_mov_b64 exec, -1')
    I(f'v_lshlrev_b32 v{vT0}, 2, v{vHi}')
    I(f'v_sub_u32 v{vT0}, v{vL31}, v{vT0}')
    for r in range(16):
        I(f'v_cmp_le_i32 {sr(sMASK[r],2)}, {8*(r>>2)+(r&3)}, v{vT0}')
    I(f'v_mov_b32 v{vT2}, 0xffff')
    I(f'v_mov_b32 v{vT3}, 0xffff0000')
    for k in range(8):
        I(f'v_cndmask_b32 v{vT0}, 0, v{vT2}, {sr(sMASK[2*k],2)}')
        I(f'v_cndmask_b32 v{vT1}, 0, v{vT3}, {sr(sMASK[2*k+1],2)}')
        I(f'v_or_b32 v{vBM+k}, v{vT0}, v{vT1}')
    E.wait(vm='pre')
    flag_T((s_bu, 32))
    V.put(pk, 32)
    stamp(4)
    poll_check(vPl0, vPq, WS_F, 'pq', sNeedQ)
    stamp(5)
    I(f's_mul_i32 s{s_t3}, s{s_c}, 448')
    I(f's_add_u32 s{s_t3}, s{s_t3}, {WS_QKV}')
    I(f's_mul_i32 s{s_t1}, s{s_T}, 86016')
    I(f's_add_u32 s{s_t1}, s{s_t1}, s{s_t3}')
    I(f's_add_u32 m0, s{s_w3a}, 12288')
    for st in range(2):
        I(f'buffer_load_dwordx4 v{vKo+st}, {sr(sWS,4)}, s{s_t1} offen offset:{st*1024} sc1 lds', tag='qk')
    s_tp = s_bu
    I(f's_mul_i32 s{s_tp}, s{s_w}, 3')
    I(f's_lshl_b32 s{s_t1}, s{s_i}, 2')
    I(f's_add_u32 s{s_tp}, s{s_tp}, s{s_t1}')
    I(f's_sub_u32 s{s_tp}, s{s_tp}, 8')
    for isv in range(2):
        if isv:
            I('s_mov_b32 exec_lo, 0x0fffffff')
            I('s_mov_b32 exec_hi, 0x0fffffff')
        for j in range(3):
            I(f's_add_i32 s{s_t0}, s{s_tp}, {j}')
            I(f's_max_i32 s{s_t0}, s{s_t0}, 0')
            I(f's_mul_i32 s{s_t0}, s{s_t0}, 86016')
            I(f's_add_u32 s{s_t0}, s{s_t0}, s{s_t3}')
            I(f's_add_u32 s{s_t1}, s{s_t0}, {7168 * (1 + isv)}')
            I(f's_add_u32 m0, s{s_t2}, {(VREG if isv else KREG) + j*2048}')
            for st in range(2):
                I(f'buffer_load_dwordx4 v{(vVo if isv else vKo)+st}, {sr(sWS,4)}, s{s_t1} offen offset:{st*1024} sc1 lds', tag='v' if isv else 'qk')
    I('s_mov_b64 exec, -1')
    poll_check(vPl1, vPh, WS_F, 'pe', sNeedE)
    for p in range(3 + P['pre_w3'], 6): vq.extend(w3_pieces(p))
    for p in range(0, 2): vq.extend(h_pieces(p))
    for _ in range(6): vq.pop(0)()
    E.wait(vm='qk')
    I(f's_cmp_ge_i32 s{s_tp}, 0')
    I('s_cbranch_scc1 L_valid')
    sn = E.snapshot()
    I(f'v_lshrrev_b32 v{vT0}, 2, v{vLane}')
    I(f'v_and_b32 v{vT1}, 3, v{vLane}')
    I(f'v_lshlrev_b32 v{vT2}, 2, v{vT1}')
    I(f'v_xor_b32 v{vT2}, 28, v{vT2}')
    I(f'v_lshlrev_b32 v{vT2}, 4, v{vT2}')
    I(f'v_lshl_add_u32 v{vT2}, v{vLane}, 9, v{vT2}')
    I(f's_add_u32 s{s_t0}, s{s_t2}, {KREG}')
    I(f'v_add_u32 v{vT2}, s{s_t0}, v{vT2}')
    I(f'v_add_u32 v{vT0}, s{s_tp}, v{vT0}')
    I(f'v_cmp_gt_i32 vcc, 0, v{vT0}')
    I(f's_and_b64 exec, vcc, 0xfff')
    I(f'ds_write_b128 v{vT2}, {vr(one4,4)}')
    I('s_mov_b64 exec, -1')
    E.restore(sn)
    E.label('L_valid')
    I('s_waitcnt lgkmcnt(0)'); E.lgkm = []
    I('s_barrier')
    stamp(6)
    KF = V.get(72, 4); Sx = V.get(48, 4); Mx = V.get(16, 4); NM = V.get(16, 4); O = V.get(16, 4); qf = V.get(8, 4)
    vM, vM2, vG = V.get(), V.get(), V.get()
    vOm = V.get(2)
    VF = 224
    t0 = E.t
    last = [E.t]
    events = []
    def tick():
        while events and E.t - t0 >= events[0][0]: events.pop(0)[1]()
        if vq and E.t - last[0] >= P['vpace']:
            last[0] = E.t; vq.pop(0)()
    def J(s, tag=None):
        I(s, tag); tick()
    def late_issue(): poll_issue(vPl1, vPh, WS_F, 'pl')
    def late_check():
        poll_check(vPl1, vPh, WS_F, 'pl', sNeedL)
        stamp(9)
        I(f'v_lshlrev_b32 v{vT0}, 2, v{vL31}')
        I(f's_lshl_b32 s{s_t0}, s{s_T}, 7')
        I(f's_add_u32 s{s_t0}, s{s_t0}, {WS_G}')
        I(f'buffer_load_dword v{vG}, v{vT0}, {sr(sWS,4)}, s{s_t0} offen sc1', tag='g')
        I(f's_lshl_b32 s{s_t0}, s{s_hb0}, 7')
        I(f's_add_u32 s{s_t0}, s{s_t0}, {WS_G + 0x2000}')
        I(f'buffer_load_dword v{vOm}, v{vT0}, {sr(sWS,4)}, s{s_t0} offen sc1', tag='g')
        I(f's_xor_b32 s{s_t0}, s{s_t0}, 128')
        I(f'buffer_load_dword v{vOm+1}, v{vT0}, {sr(sWS,4)}, s{s_t0} offen sc1', tag='g')
        for p in range(4, 14): vq.extend(h_pieces(p))
    events += [(P['latepoll_t'], late_issue), (P['latechk_t'], late_check)]
    def kread(dst, va, off, tag):
        for dl in range(2):
            for rho in range(2):
                J(f'ds_read_b64_tr_b16 {vr(dst+4*dl+2*rho,2)}, v{va+rho} offset:{off+dl*256}', tag=tag)
    order = [0, 8, 1, 2, 3, 4, 5, 6, 7]
    kread(qf, vQt, 0, 'q')
    for j in order[:2]: kread(KF+8*j, vKt, j*2048, f'k{j}')
    E.wait(lgkm='q')
    I(f'v_or_b32 v{qf+6}, v{qf+6}, v{vQpad}')
    vq.extend(w3_pieces(6))
    for p in range(2, 4): vq.extend(h_pieces(p))
    def sdst(idx):
        return Mx if idx == 1 else Sx + 16 * ([0, None, 1, 2, 0, 1, 2, 0, 1][idx])
    firstmax = [True]
    def maxops(b):
        r = []
        for k in range(0, 16, 4):
            if firstmax[0]:
                r += [f'v_max_f32 v{vM}, v{b}, v{b+1}', f'v_max_f32 v{vM2}, v{b+2}, v{b+3}']; firstmax[0] = False
            else:
                r += [f'v_max3_f32 v{vM}, v{b+k}, v{b+k+1}, v{vM}', f'v_max3_f32 v{vM2}, v{b+k+2}, v{b+k+3}, v{vM2}']
        return r
    fq = []
    for idx, j in enumerate(order):
        d = vr(sdst(idx), 16)
        if idx == 3:
            fq += [f'v_cndmask_b32 v{Mx+r}, v{Sx+r}, v{Mx+r}, {sr(sMASK[r],2)}' for r in range(16)]
        if idx == 4:
            while fq: J(fq.pop(0))
            fq += maxops(Mx)
        if idx >= 4: fq += maxops(sdst(idx - 2))
        if idx >= 5:
            pass
        E.wait(lgkm=f'k{j}')
        for dl in range(2):
            J(f'{MF} {d}, {vr(KF+8*j+4*dl,4)}, {vr(qf+4*dl,4)}, {"0" if dl == 0 else d}')
            if idx + 2 < 9:
                jn = order[idx+2]
                for rho in range(2):
                    J(f'ds_read_b64_tr_b16 {vr(KF+8*jn+4*dl+2*rho,2)}, v{vKt+rho} offset:{jn*2048+dl*256}', tag=f'k{jn}')
            n = (len(fq) + 1) // 2 if dl == 0 else len(fq)
            for _ in range(n): J(fq.pop(0))
    E.wait(vm='v')
    I('s_barrier')
    def vread(j, slot):
        for st in range(2):
            J(f'ds_read_b128 {ar(VF+8*slot+4*st,4)}, v{vVt} offset:{VREG-KREG+j*2048+st*1024}', tag=f'v{j}')
    vslot = {8: 0, 0: 1, 1: 2, 2: 3, 3: 0, 4: 1, 5: 2, 6: 3, 7: 0}
    for j in (8, 0, 1, 2): vread(j, vslot[j])
    for s_ in maxops(sdst(7)) + maxops(sdst(8)): J(s_)
    J(f'v_max_f32 v{vM}, v{vM}, v{vM2}')
    J(f'v_mov_b32 v{vM2}, v{vM}')
    J(f'v_permlane32_swap_b32 v{vM}, v{vM2}')
    J(f'v_max_f32 v{vM}, v{vM}, v{vM2}')
    J(f'v_sub_f32 v{NM}, 0, v{vM}')
    J(f'v_sub_f32 v{NM+1}, 0, v{vM}')
    for k in range(2, 16, 2): J(f'v_mov_b64 {vr(NM+k,2)}, {vr(NM,2)}')
    def qk2(j):
        d = vr(Sx + 16*(j % 3), 16)
        return [f'{MF} {d}, {vr(KF+8*j,4)}, {vr(qf,4)}, {vr(NM,16)}', f'{MF} {d}, {vr(KF+8*j+4,4)}, {vr(qf+4,4)}, {d}']
    firstpv = [True]
    def pv(j, preg, st):
        d = vr(O, 16)
        E.wait(lgkm=f'v{j}')
        J(f'{MF} {d}, {ar(VF+8*vslot[j]+4*st,4)}, {vr(preg,4)}, {"0" if firstpv[0] else d}')
        firstpv[0] = False
    mq = qk2(1) + qk2(2)
    J(mq.pop(0))
    pend = []
    for j in [8, 1, 2, 3, 4, 5, 6, 7]:
        b = Mx if j == 8 else Sx + 16*(j % 3)
        if j != 8 and j + 2 <= 7: nq = qk2(j + 2)
        else: nq = []
        for st in range(2):
            bb = b + 8*st
            if j == 8:
                for k in range(8): J(f'v_sub_f32 v{bb+k}, v{bb+k}, v{vM}')
                if mq: J(mq.pop(0))
            for k in range(8):
                J(f'v_exp_f32 v{bb+k}, v{bb+k}')
                if k == 1 and pend: pv(*pend.pop(0))
                if k == 5:
                    if pend: pv(*pend.pop(0))
                    elif mq: J(mq.pop(0))
                    elif nq: J(nq.pop(0))
            for k in range(4): J(f'v_cvt_pk_bf16_f32 v{bb+k}, v{bb+2*k}, v{bb+2*k+1}')
            if j == 8:
                for k in range(4):
                    J(f'v_bfi_b32 v{bb+4+k}, v{vBM+4*st+k}, 0, v{bb+k}')
                    J(f'v_and_b32 v{bb+k}, v{vBM+4*st+k}, v{bb+k}')
                pend += [(8, bb, st), (0, bb+4, st)]
            else:
                pend.append((j, bb, st))
        while mq: J(mq.pop(0))
        while nq: J(nq.pop(0))
        if j == 1: vread(3, vslot[3]); vread(4, vslot[4])
        elif j in (2, 3, 4): vread(j + 3, vslot[j + 3])
    while pend: pv(*pend.pop(0))
    while events: events.pop(0)[1]()
    I(f's_lshl_b32 s{s_t2}, s{s_T}, 15')
    I(f's_lshl_b32 s{s_t3}, s{s_c}, 11')
    I(f's_add_u32 s{s_t2}, s{s_t2}, s{s_t3}')
    I(f's_add_u32 s{s_t2}, s{s_t2}, {WS_O}')
    for _ in range(2):
        if vq: vq.pop(0)()
    I(f'v_cmp_eq_u32 vcc, 0, v{vHi}')
    I(f'v_mov_b32 v{vM}, v{O+12}')
    I(f'v_mov_b32 v{vM2}, v{O+12}')
    I(f'v_permlane32_swap_b32 v{vM}, v{vM2}')
    I(f'v_rcp_f32 v{vM2}, v{vM2}')
    E.wait(vm='g')
    I(f'v_mul_f32 v{vM2}, v{vM2}, v{vG}')
    I(f'v_cndmask_b32 v{vM}, 0, v{vM2}, vcc')
    for st in range(2):
        for r in range(8*st, 8*st+8): I(f'v_mul_f32 v{O+r}, v{O+r}, v{vM if r >= 12 else vM2}')
        for k in range(4): I(f'v_cvt_pk_bf16_f32 v{qf+4*st+k}, v{O+8*st+2*k}, v{O+8*st+2*k+1}')
        I(f'buffer_store_dwordx4 {vr(qf+4*st,4)}, v{vL16}, {sr(sWS,4)}, s{s_t2} offen offset:{st*1024} sc1', tag='ost')
    stamp(7)
    def o_flag():
        E.wait(vm='ost')
        I(f's_lshl_b32 s{s_t0}, s{s_T}, 4')
        I(f's_add_u32 s{s_t0}, s{s_t0}, s{s_c}')
        I(f's_lshl_b32 s{s_t0}, s{s_t0}, 2')
        I(f's_add_u32 s{s_t0}, s{s_t0}, {WS_FO}')
        flag_store(s_t0)
        stamp(8)
    I(f's_cmp_eq_u32 s{s_ns}, 7')
    I('s_cbranch_scc1 L_idle')
    snap_idle = E.snapshot()
    for r_, n_ in ((KF, 72), (Sx, 48), (Mx, 16), (NM, 16), (O, 16), (one4, 4), (vBM, 8)): V.put(r_, n_)

    ac3 = V.get(64, 4); bf = V.get(24, 4); rb = V.get(48, 4)
    def breads(k):
        _, va, off = w3_slot(k >> 1)
        return [f'ds_read_b64_tr_b16 {vr(bf+8*(k%3)+4*a+2*h,2)}, v{va+a} offset:{off+(k&1)*2048+h*1024}' for a in range(2) for h in range(2)]
    assert E.cnt.get('w3_13', 0) == 2
    sys.stderr.write(f'P2 est cycles {E.t - t0}, h pieces left {len(vq)}\n')
    hq = list(vq); vq[:] = []
    wq = []
    for k in (0, 1):
        E.wait(vm=f'w3_{k}')
        for r in breads(k): I(r, tag=f'b{k}')
    for k in range(36):
        if k == 28:
            for e in range(4):
                for r in range(16): I(f'v_mul_f32 v{ac3+16*e+r}, v{ac3+16*e+r}, v{vOm+(e&1)}')
        while E.cnt.get(f'h{k}', 0) < 2: hq.pop(0)()
        E.wait(vm=f'h{k}', lgkm=f'b{k}')
        if k & 1 and (k >> 1) + 7 < 18: wq.extend(w3_pieces((k >> 1) + 7))
        rd = []
        for m in range(4):
            a, b = m >> 1, m & 1
            d = vr(ac3+32*a+16*b, 16)
            I(f'{MF} {d}, {vr(bf+8*(k%3)+4*a,4)}, {areg(k,b)}, {"0" if k == 0 else d}')
            if m == 1 and k + 2 < 36:
                while E.cnt.get(f'w3_{k+2}', 0) < 2: wq.pop(0)()
                E.wait(vm=f'w3_{k+2}'); rd = breads(k + 2)
            for _ in range(2):
                if rd: I(rd.pop(0), tag=f'b{k+2}')
            q = (wq if (m & 1) == 0 else hq)
            if not q: q = hq if q is wq else wq
            if q: q.pop(0)()
        if k == P.get('oflag_k', 5): o_flag()
        if k == P['opoll_k']: poll_issue(vPl0, vPo, WS_FO, 'po')
        if k == P['ochk_k']:
            assert not hq
            stamp(10)
            poll_check(vPl0, vPo, WS_FO, 'po', sNeedO)
            stamp(11)
            for p in range(14, 18): hq.extend(h_pieces(p))
        if k == 8: I('s_barrier')
    stamp(12)
    vRw = V.get(3); vRr = V.get()
    for e in range(1, 4):
        I(f's_xor_b32 s{s_t0}, s{s_w}, {e}')
        I(f's_mul_i32 s{s_t0}, s{s_t0}, 12288')
        I(f's_add_u32 s{s_t0}, s{s_t0}, {RED + (e-1)*4096}')
        I(f'v_add_u32 v{vRw+e-1}, s{s_t0}, v{vL16}')
    I(f's_mul_i32 s{s_t0}, s{s_w}, 12288')
    I(f's_add_u32 s{s_t0}, s{s_t0}, {RED}')
    I(f'v_add_u32 v{vRr}, s{s_t0}, v{vL16}')
    for e in (1, 2, 3):
        for q in range(4):
            I(f'ds_write_b128 v{vRw+e-1}, {vr(ac3+16*e+4*q,4)} offset:{q*1024}', tag='red')
    I(f'v_mul_u32_u24 v{vT0}, 896, v{vL31}')
    I(f'v_lshl_add_u32 v{vT0}, v{vHi}, 4, v{vT0}')
    I(f's_mul_i32 s{s_t0}, s{s_hb0}, {32*896}')
    I(f's_lshl_b32 s{s_t1}, s{s_ns}, 7')
    I(f's_add_u32 s{s_t0}, s{s_t0}, s{s_t1}')
    I(f's_lshr_b32 s{s_t1}, s{s_w}, 1')
    I(f's_lshl_b32 s{s_t1}, s{s_t1}, 6')
    I(f's_add_u32 s{s_t0}, s{s_t0}, s{s_t1}')
    E.wait(lgkm='all')
    I('s_barrier')
    for q in range(4):
        for e in range(3):
            I(f'ds_read_b128 {vr(rb+16*e+4*q,4)}, v{vRr} offset:{e*4096+q*1024}', tag=f'rr{q}')
    for q in range(4):
        E.wait(lgkm=f'rr{q}')
        for r in range(4*q, 4*q+4):
            I(f'v_add_f32 v{ac3+r}, v{ac3+r}, v{rb+r}')
            I(f'v_add_f32 v{rb+16+r}, v{rb+16+r}, v{rb+32+r}')
        for r in range(4*q, 4*q+4):
            I(f'v_add_f32 v{ac3+r}, v{ac3+r}, v{rb+16+r}')
        for k in range(2*q, 2*q+2): I(f'v_cvt_pk_bf16_f32 v{bf+k}, v{ac3+2*k}, v{ac3+2*k+1}')
        if q & 1:
            p = q >> 1
            I(f'v_permlane32_swap_b32 v{bf+4*p}, v{bf+4*p+2}')
            I(f'v_permlane32_swap_b32 v{bf+4*p+1}, v{bf+4*p+3}')
            I(f'buffer_store_dwordx4 {vr(bf+4*p,4)}, v{vT0}, {sr(sOUT,4)}, s{s_t0} offen offset:{32*p}', tag='out')
    E.label('L_fin')
    if stamps:
        I('s_waitcnt vmcnt(0)')
        stamp(13)
        I(f's_lshl_b32 s{s_t0}, s2, 2')
        I(f's_add_u32 s{s_t0}, s{s_t0}, s{s_w}')
        I(f's_lshl_b32 s{s_t0}, s{s_t0}, 8')
        I(f's_add_u32 s{s_t0}, s{s_t0}, {WS_STAMP}')
        I(f'v_lshlrev_b32 v{vT0}, 2, v{vLane}')
        I(f'buffer_store_dword v{vStamp}, v{vT0}, {sr(sWS,4)}, s{s_t0} offen')
        I(f's_load_dwordx2 {sr(sW2,2)}, s[0:1], 64')
        E.wait(lgkm='all')
        I(f's_and_b32 s{sW2+1}, s{sW2+1}, 0xffff')
        I(f's_mov_b32 s{sW2+2}, 64')
        I(f'v_readlane_b32 s{s_t0}, v{vStamp}, 16')
        I(f'v_not_b32 v{vT1}, v{vStamp}')
        I(f'v_cmp_eq_u32 vcc, 15, v{vLane}')
        I(f'v_writelane_b32 v{vStamp}, s{s_t0}, 14')
        I(f'v_cndmask_b32 v{vStamp}, v{vStamp}, v{vT1}, vcc')
        E.raw(f'    buffer_atomic_umax v{vStamp}, v{vT0}, {sr(sW2,4)}, 0 offen')
    E.label('L_end')
    I('s_endpgm')
    E.label('L_idle')
    E.restore(snap_idle)
    o_flag()
    I(f's_xor_b32 s{s_t0}, s2, 224')
    I(f's_or_b32 s{s_t0}, s{s_t0}, s{s_w}')
    I(f's_cmp_lg_u32 s{s_t0}, 0')
    I('s_cbranch_scc1 L_fin')
    I(f's_mov_b32 s{s_cnt}, 0')
    I(f's_movk_i32 s{s_t0}, {WS_FO}')
    E.label('L_epoch')
    for q in range(4):
        I(f'buffer_load_dwordx4 {vr(ac3+4*q,4)}, v{vL16}, {sr(sWS,4)}, s{s_t0} offen offset:{q*1024} sc1')
    I('s_waitcnt vmcnt(0)')
    for r in range(16): I(f'v_xor_b32 v{ac3+r}, v{ac3+r}, v{vTag}')
    for r in range(1, 16, 2):
        I(f'v_or3_b32 v{ac3}, v{ac3}, v{ac3+r}, v{ac3+min(r+1,15)}')
    I(f'v_cmp_ne_u32 vcc, 0, v{ac3}')
    I(f's_add_u32 s{s_cnt}, s{s_cnt}, 1')
    I(f's_and_b64 {sr(sP,2)}, vcc, vcc')
    I('s_cbranch_scc0 L_epoch_ok')
    I('s_sleep 8')
    I(f's_cmp_lt_u32 s{s_cnt}, {SPIN_MAX}')
    I('s_cbranch_scc1 L_epoch')
    E.label('L_epoch_ok')
    I(f's_mov_b32 s{s_t0}, 0')
    flag_store(s_t0)
    I('s_branch L_fin')

    head = open('cdna_kernels/' + NAME + '.s.ref').read().split('; Override')[0]
    out = head + f'; @launch grid=(256,1,1) block=(256,1,1) lds={LDS_BYTES}\n'
    out += f'''.amdgcn_target "amdgcn-amd-amdhsa--gfx950"
.text
.globl {NAME}_kernel
.p2align 8
.type {NAME}_kernel,@function
'''
    out += E.text()
    out += f'''.fill 12288, 4, 0xBF810000
.section .rodata,"a"
.p2align 6
.amdhsa_kernel {NAME}_kernel
  .amdhsa_next_free_vgpr 512
  .amdhsa_next_free_sgpr 102
  .amdhsa_accum_offset 256
  .amdhsa_group_segment_fixed_size 0
  .amdhsa_kernarg_size 80
  .amdhsa_user_sgpr_count 2
  .amdhsa_user_sgpr_kernarg_segment_ptr 1
  .amdhsa_system_sgpr_workgroup_id_x 1
.end_amdhsa_kernel
'''
    sys.stderr.write(f'instrs {E.nins} vgpr_hi {V.hi} sgpr_hi {S.hi}\n')
    return out

if __name__ == '__main__':
    st = 'stamps' in sys.argv[2:]
    kw = {a.split('=')[0]: int(a.split('=')[1]) for a in sys.argv[2:] if '=' in a}
    txt = generate(st, **kw)
    open(sys.argv[1], 'w').write(txt)
```

```python
import sys, math, struct
from asmlib import Emitter, Alloc

NAME = 'gated_mix__sliding_block__dense_activation_relu__prompt'
WS_F = 0x1000
WS_FO = 0x5000
WS_G = 0x6000
WS_STAMP = 0x10000
WS_QKV = 0x100000
WS_H = 0x700000
WS_O = 0xE00000
WS_SIZE = 0x1000000
XRING = 65536
KREG = 65536
VREG = KREG + 24576
RED = 65536
R2 = 114688
LDS_BYTES = 163840
OOB = 0x7F000000
SPIN_MAX = 20000
TAGINC = 0x9E3779B9

def f32bits(x): return struct.unpack('<I', struct.pack('<f', x))[0]

DEF = dict(aflag_g=36, vpace=72, pre_w3=2, latepoll_t=900, latechk_t=1700, opoll_k=18, ochk_k=22, epi_rate=6)

def generate(stamps=False, **kw):
    P = dict(DEF); P.update(kw)
    E = Emitter(); I = E.I
    V = Alloc(256, 1)
    S = Alloc(102, 3)
    def vr(i, n): return f'v[{i}:{i+n-1}]'
    def ar(i, n): return f'a[{i}:{i+n-1}]'
    def sr(i, n): return f's[{i}:{i+n-1}]'
    uid = [0]
    def L(p):
        uid[0] += 1; return f'L_{p}_{uid[0]}'
    MF = 'v_mfma_f32_32x32x16_bf16'

    sX, sWQ, sW1, sA1, sW2, sWO, sWS, sOUT = [S.get(4, 4) for _ in range(8)]
    kp = S.get(20, 4)
    s_w, s_i, s_c, s_mt, s_ns, s_T, s_t0, s_t1, s_t2, s_t3, s_cnt = [S.get() for _ in range(11)]
    p1s = [S.get() for _ in range(14)]
    s_kx, s_kw, s_xb, s_wa0, s_wa1, s_wb, s_m0x, s_m0w, s_u0, s_u1, s_rsA1, s_a1, s_bu, s_rho = p1s
    sP = S.get(2, 2); sGP = S.get(2, 2); sTM = S.get(2, 2)

    vStamp = V.get()
    def stamp(k):
        if not stamps: return
        I(f's_memrealtime {sr(sTM,2)}')
        E.wait(lgkm='all')
        I(f'v_writelane_b32 v{vStamp}, s{sTM}, {k}')

    E.raw(f'{NAME}_kernel:')
    I('s_cmp_ge_u32 s2, 256')
    I('s_cbranch_scc1 L_end')
    I(f's_load_dwordx16 {sr(kp,16)}, s[0:1], 0')
    I(f's_load_dwordx4 {sr(kp+16,4)}, s[0:1], 64')
    if stamps: I(f's_memrealtime {sr(sTM,2)}')
    vT0, vT1, vT2, vT3 = [V.get() for _ in range(4)]
    vLane, vHi, vL31, vCode = V.get(), V.get(), V.get(), V.get()
    I(f's_getpc_b64 {sr(sP,2)}')
    I(f's_lshr_b32 s{s_t1}, s2, 3')
    I(f'v_lshrrev_b32 v{vT0}, 6, v0')
    I(f'v_and_b32 v{vT1}, 3, v0')
    I(f'v_readfirstlane_b32 s{s_w}, v{vT0}')
    I(f'v_lshl_add_u32 v{vT1}, v{vT0}, 2, v{vT1}')
    I(f's_lshl_b32 s{s_t2}, s{s_t1}, 11')
    I(f'v_lshl_add_u32 v{vT1}, v{vT1}, 7, s{s_t2}')
    I(f'global_load_dword v{vCode}, v{vT1}, {sr(sP,2)}', tag='code')
    I(f'v_and_b32 v{vLane}, 63, v0')
    I(f's_and_b32 s{s_t0}, s2, 7')
    I(f's_and_b32 s{s_t2}, s{s_t1}, 3')
    I(f's_lshr_b32 s{s_ns}, s{s_t1}, 2')
    I(f's_lshl_b32 s{s_mt}, s{s_t0}, 2')
    I(f's_add_u32 s{s_mt}, s{s_mt}, s{s_t2}')
    I(f's_and_b32 s{s_i}, s{s_mt}, 15')
    I(f's_lshr_b32 s{s_t3}, s{s_t0}, 2')
    I(f's_lshl_b32 s{s_c}, s{s_t3}, 3')
    I(f's_add_u32 s{s_c}, s{s_c}, s{s_ns}')
    I(f's_lshl_b32 s{s_rho}, s{s_t2}, 1')
    I(f's_add_u32 s{s_rho}, s{s_rho}, s{s_ns}')
    I(f's_sub_u32 s{s_t0}, s{s_rho}, 7')
    I(f's_cmp_ge_u32 s{s_rho}, 7')
    I(f's_cselect_b32 s{s_rho}, s{s_t0}, s{s_rho}')
    I(f's_mov_b32 s{s_kx}, s{s_rho}')
    I(f's_mov_b32 s{s_kw}, s{s_rho}')
    I(f's_lshl_b32 s{s_T}, s{s_i}, 2')
    I(f's_add_u32 s{s_T}, s{s_T}, s{s_w}')
    def unit_of(dst, e):
        I(f's_and_b32 s{s_t0}, s{e}, 3')
        I(f's_mul_i32 s{s_t0}, s{s_t0}, 7')
        I(f's_lshr_b32 s{dst}, s{e}, 2')
        I(f's_add_u32 s{dst}, s{dst}, s{s_t0}')
    I(f's_sub_u32 s{s_t1}, s{s_c}, s{s_t3}')
    I(f's_sub_u32 s{s_t1}, s{s_t1}, 5')
    I(f's_add_u32 s{s_t2}, s{s_t3}, 9')
    I(f's_cmp_eq_u32 s{s_ns}, 7')
    I(f's_cselect_b32 s{s_t1}, s{s_t2}, s{s_t1}')
    unit_of(s_a1, s_t1)
    I(f's_add_u32 s{s_t2}, s{s_c}, 16')
    I(f's_cmp_lt_u32 s{s_c}, 5')
    I(f's_cselect_b32 s{s_a1}, s{s_t2}, s{s_a1}')
    I(f's_cselect_b32 s{s_rsA1}, 2688, 3584' if False else f's_movk_i32 s{s_t2}, 3584')
    I(f's_cselect_b32 s{s_rsA1}, 2688, s{s_t2}')
    vXo = V.get(4); vWq = V.get(2); vW1 = V.get(2); vWa1 = V.get(2); vWl = V.get(); vL8 = V.get()
    I(f'v_lshrrev_b32 v{vL8}, 3, v{vLane}')
    I(f'v_mul_u32_u24 v{vT2}, 896, v{vL8}')
    I(f'v_lshrrev_b32 v{vT0}, 4, v{vLane}')
    I(f'v_and_b32 v{vT3}, 7, v{vLane}')
    I(f'v_xor_b32 v{vT3}, v{vT3}, v{vT0}')
    I(f'v_lshl_add_u32 v{vXo}, v{vT3}, 4, v{vT2}')
    I(f'v_add_u32 v{vXo+2}, {2*(7168-1024)}, v{vXo}')
    I(f'v_xor_b32 v{vT3}, 4, v{vT3}')
    I(f'v_lshl_add_u32 v{vXo+1}, v{vT3}, 4, v{vT2}')
    I(f'v_add_u32 v{vXo+3}, {3*(7168-1024)}, v{vXo+1}')
    I(f'v_add_u32 v{vXo+1}, {7168-1024}, v{vXo+1}')
    I(f'v_and_b32 v{vT0}, 1, v{vT0}')
    I(f'v_lshlrev_b32 v{vT0}, 2, v{vT0}')
    I(f'v_and_b32 v{vT3}, 7, v{vLane}')
    I(f'v_xor_b32 v{vT3}, v{vT3}, v{vT0}')
    I(f'v_lshlrev_b32 v{vWl}, 4, v{vT3}')
    I(f'v_mul_u32_u24 v{vT2}, 2688, v{vL8}')
    I(f'v_add_u32 v{vWq}, v{vT2}, v{vWl}')
    I(f'v_add_u32 v{vWq+1}, {8*2688-1024}, v{vWq}')
    I(f'v_mul_u32_u24 v{vT2}, s{s_rsA1}, v{vL8}')
    I(f'v_add_u32 v{vWa1}, v{vT2}, v{vWl}')
    I(f's_lshl_b32 s{s_t2}, s{s_rsA1}, 3')
    I(f's_sub_u32 s{s_t2}, s{s_t2}, 1024')
    I(f'v_add_u32 v{vWa1+1}, s{s_t2}, v{vWa1}')
    I(f's_mul_i32 s{s_xb}, s{s_T}, {32*896}')
    I(f's_lshl_b32 s{s_m0w}, s{s_w}, 11')
    I(f's_lshl_b32 s{s_m0x}, s{s_w}, 12')
    I(f's_add_u32 s{s_m0x}, s{s_m0x}, {XRING}')
    I(f's_mul_i32 s{s_wa0}, s{s_w}, {16*2688}')
    I(f's_lshl_b32 s{s_t0}, s{s_c}, 7')
    I(f's_add_u32 s{s_wa0}, s{s_wa0}, s{s_t0}')
    I(f's_lshl_b32 s{s_rsA1}, s{s_rsA1}, 4')
    I(f's_mul_i32 s{s_wa1}, s{s_w}, s{s_rsA1}')
    I(f's_lshl_b32 s{s_t0}, s{s_a1}, 7')
    I(f's_add_u32 s{s_wa1}, s{s_wa1}, s{s_t0}')
    I(f's_lshl_b32 s{s_rsA1}, s{s_rsA1}, 2')
    E.wait(lgkm='all')
    def srd(d, p, nbytes):
        I(f's_mov_b32 s{d}, s{p}')
        I(f's_and_b32 s{d+1}, s{p+1}, 0xffff')
        I(f's_mov_b32 s{d+2}, {nbytes}')
        I(f's_mov_b32 s{d+3}, 0x00020000')
    srd(sX, kp+0, 2048*896)
    def adv(k):
        I(f's_add_u32 s{k}, s{k}, 1')
        I(f's_cmp_eq_u32 s{k}, 7')
        I(f's_cselect_b32 s{k}, 0, s{k}')
    def x_pieces(n):
        def mk(q):
            def f():
                I(f's_add_u32 m0, s{s_m0x}, {(n % 3) * 16384}')
                if q == 0:
                    I(f's_lshl_b32 s{s_u0}, s{s_kx}, 7')
                    I(f's_add_u32 s{s_u0}, s{s_u0}, s{s_xb}')
                I(f'buffer_load_dwordx4 v{vXo+q}, {sr(sX,4)}, s{s_u0} offen offset:{q*1024} lds', tag=f'c{n}')
                if q == 3: adv(s_kx)
            return f
        def g(q):
            def f():
                I(f'buffer_load_dwordx4 v{vXo+q}, {sr(sX,4)}, s{s_u0} offen offset:{q*1024} lds', tag=f'c{n}')
                if q == 3: adv(s_kx)
            return f
        return [mk(0), g(1), g(2), g(3)]
    def w_part(n, part, srdw, vo, rs, base, advance):
        def f0():
            I(f's_add_u32 m0, s{s_m0w}, {(n % 4) * 16384 + part * 8192}')
            I(f's_mul_i32 s{s_u1}, s{s_kw}, {rs}')
            I(f's_add_u32 s{s_u1}, s{s_u1}, s{base}')
            I(f'buffer_load_dwordx4 v{vo}, {sr(srdw,4)}, s{s_u1} offen lds', tag=f'c{n}')
        def f1():
            I(f'buffer_load_dwordx4 v{vo+1}, {sr(srdw,4)}, s{s_u1} offen offset:1024 lds', tag=f'c{n}')
            if advance: adv(s_kw)
        return [f0, f1]
    def w_pieces(n):
        if n < 7:
            return w_part(n, 0, sWQ, vWq, 64*2688, s_wa0, False) + w_part(n, 1, sA1, vWa1, f's{s_rsA1}', s_wa1, True)
        m = (n - 7) % 4
        r = w_part(n, 0, sW1, vW1, 64*3584, s_wb, True)
        if m < 3: r += w_part(n, 1, sW1, vW1, 64*3584, s_wb, True)
        return r
    for f in x_pieces(0): f()
    srd(sWQ, kp+2, 448*2688)
    srd(sW1, kp+8, 448*3584)
    I(f's_cmp_lt_u32 s{s_c}, 5')
    for q in range(3): I(f's_cselect_b32 s{sA1+q}, s{sWQ+q}, s{sW1+q}')
    I(f's_mov_b32 s{sA1+3}, 0x00020000')
    for f in w_pieces(0): f()
    for n in (1, 2):
        for f in x_pieces(n) + w_pieces(n): f()
    for f in w_pieces(3): f()
    srd(sWS, kp+18, WS_SIZE)
    vTag = V.get()
    I(f'v_mov_b32 v{vT0}, 0')
    I(f'buffer_load_dword v{vTag}, v{vT0}, {sr(sWS,4)}, 0 offen sc1', tag='c3')
    if stamps:
        I(f'v_mov_b32 v{vStamp}, 0')
        I(f'v_writelane_b32 v{vStamp}, s{sTM}, 15')
    stamp(0)
    srd(sWO, kp+4, 448*896)
    srd(sW2, kp+10, 1792*896)
    srd(sOUT, kp+14, 2048*896)
    I(f's_mov_b64 {sr(sGP,2)}, {sr(kp+12,2)}')
    I(f's_cmp_eq_u32 s{s_ns}, 7')
    I(f's_cselect_b32 s{sW2+2}, 0, s{sW2+2}')
    S.put(kp, 20)
    s_wc, s_ws, s_we, s_hc, s_hs, s_he, s_f1, s_f2, s_w3a, s_w3b, s_hb0 = [S.get() for _ in range(11)]
    sNeedQ, sNeedE, sNeedL, sNeedO = [S.get(2, 2) for _ in range(4)]

    I(f'v_lshrrev_b32 v{vHi}, 5, v{vLane}')
    I(f'v_and_b32 v{vL31}, 31, v{vLane}')
    vXr = V.get(4); vWt = V.get(2); vWc = V.get(); vQs = V.get(); vFa = V.get()
    vR, vNC, vL16 = V.get(), V.get(), V.get()
    I(f'v_bfe_u32 v{vT0}, v{vLane}, 1, 3')
    I(f'v_xor_b32 v{vT0}, v{vT0}, v{vHi}')
    I(f'v_lshlrev_b32 v{vT2}, 7, v{vL31}')
    I(f'v_add_u32 v{vT2}, s{s_m0x}, v{vT2}')
    for sg in range(4):
        I(f'v_xor_b32 v{vT3}, {2*sg}, v{vT0}')
        I(f'v_lshl_add_u32 v{vXr+sg}, v{vT3}, 4, v{vT2}')
    I(f'v_bfe_u32 v{vR}, v{vLane}, 2, 2')
    I(f'v_bfe_u32 v{vT0}, v{vLane}, 4, 1')
    I(f'v_lshlrev_b32 v{vNC}, 5, v{vT0}')
    I(f'v_and_b32 v{vT0}, 3, v{vLane}')
    I(f'v_lshl_add_u32 v{vNC}, v{vT0}, 3, v{vNC}')
    I(f'v_lshrrev_b32 v{vT0}, 1, v{vR}')
    I(f'v_lshl_add_u32 v{vT1}, v{vT0}, 6, v{vNC}')
    I(f'v_lshl_add_u32 v{vT1}, v{vR}, 7, v{vT1}')
    I(f'v_lshl_add_u32 v{vWt}, v{vHi}, 10, v{vT1}')
    I(f'v_xor_b32 v{vWt+1}, 64, v{vWt}')
    I(f's_and_b32 s{s_t0}, s{s_c}, 8')
    I(f's_lshl_b32 s{s_t0}, s{s_t0}, 3')
    I(f'v_xor_b32 v{vWc}, s{s_t0}, v{vWt}')
    vW3tA = V.get(2); vW3tB = V.get(2); vW3o = V.get(5)
    I(f's_lshl_b32 s{s_w3a}, s{s_w}, 14')
    I(f's_mul_i32 s{s_w3b}, s{s_w}, 12288')
    I(f's_add_u32 s{s_w3b}, s{s_w3b}, {R2}')
    I(f'v_lshl_add_u32 v{vT1}, v{vHi}, 9, v{vT1}')
    I(f's_lshr_b32 s{s_t0}, s{s_w}, 1')
    I(f's_lshl_b32 s{s_t0}, s{s_t0}, 6')
    I(f'v_xor_b32 v{vT1}, s{s_t0}, v{vT1}')
    I(f'v_add_u32 v{vW3tA}, s{s_w3a}, v{vT1}')
    I(f'v_add_u32 v{vW3tB}, s{s_w3b}, v{vT1}')
    I(f'v_xor_b32 v{vW3tA+1}, 64, v{vW3tA}')
    I(f'v_xor_b32 v{vW3tB+1}, 64, v{vW3tB}')
    I(f'v_mul_u32_u24 v{vT2}, 3584, v{vL8}')
    I(f'v_add_u32 v{vW1}, v{vT2}, v{vWl}')
    I(f'v_add_u32 v{vW1+1}, {8*3584-1024}, v{vW1}')
    I(f'v_mul_u32_u24 v{vT2}, 896, v{vL8}')
    I(f'v_add_u32 v{vW3o}, v{vT2}, v{vWl}')
    for q in range(1, 4): I(f'v_add_u32 v{vW3o+q}, {q*(7168-1024)}, v{vW3o}')
    vOOB = V.get()
    I(f'v_mov_b32 v{vOOB}, {OOB}')
    I(f'v_cmp_eq_u32 vcc, 0, v{vHi}')
    I(f'v_lshlrev_b32 v{vL16}, 4, v{vLane}')
    I(f'v_cndmask_b32 v{vW3o+4}, v{vOOB}, v{vW3o+3}, vcc')
    vQpad = V.get()
    I(f'v_mov_b32 v{vT0}, 0xf149')
    I(f'v_cndmask_b32 v{vQpad}, v{vT0}, 0, vcc')
    V.put(vWl); V.put(vL8)
    I(f's_add_u32 s{s_t1}, s{s_c}, 11')
    unit_of(s_bu, s_t1)
    I(f's_cmp_eq_u32 s{s_ns}, 7')
    I(f's_cselect_b32 s{s_t0}, 27, s{s_bu}')
    I(f's_lshl_b32 s{s_t0}, s{s_t0}, 7')
    I(f's_mul_i32 s{s_wb}, s{s_w}, {16*3584}')
    I(f's_add_u32 s{s_wb}, s{s_wb}, s{s_t0}')
    I(f'v_mul_u32_u24 v{vQs}, 21504, v{vHi}')
    I(f'v_lshl_add_u32 v{vQs}, v{vL31}, 4, v{vQs}')
    I(f's_add_u32 s{s_t0}, s{s_a1}, 32')
    I(f's_cmp_lt_u32 s{s_c}, 5')
    I(f's_cselect_b32 s{s_t0}, s{s_a1}, s{s_t0}')
    I(f's_sub_u32 s{s_t0}, s{s_t0}, s{s_c}')
    I(f'v_mul_u32_u24 v{vT0}, s{s_t0}, v{vLane}')
    I(f's_lshl_b32 s{s_t1}, s{s_T}, 6')
    I(f's_add_u32 s{s_t1}, s{s_t1}, s{s_c}')
    I(f'v_add_u32 v{vT0}, s{s_t1}, v{vT0}')
    I(f'v_lshlrev_b32 v{vFa}, 2, v{vT0}')
    vKo = V.get(2); vVo = V.get(2); vKt = V.get(2); vQt = V.get(2); vVt = V.get()
    I(f'v_mul_u32_u24 v{vT2}, 21504, v{vHi}')
    for st in range(2):
        I(f'v_lshlrev_b32 v{vT0}, 2, v{vHi}')
        I(f'v_xor_b32 v{vT0}, v{vT0}, v{vL31}')
        if st: I(f'v_xor_b32 v{vT0}, 8, v{vT0}')
        I(f'v_lshl_add_u32 v{vT3}, v{vT0}, 4, v{vT2}')
        I(f'v_cmp_gt_u32 vcc, 28, v{vT0}')
        if st: I(f'v_add_u32 v{vT3}, {43008-1024}, v{vT3}')
        I(f'v_cndmask_b32 v{vKo+st}, v{vOOB}, v{vT3}, vcc')
    I(f'v_mov_b32 v{vVo}, v{vQs}')
    I(f'v_add_u32 v{vVo+1}, {43008-1024}, v{vQs}')
    I(f'v_bfe_u32 v{vT0}, v{vLane}, 4, 1')
    I(f'v_and_b32 v{vT1}, 1, v{vLane}')
    I(f'v_lshl_add_u32 v{vT2}, v{vT0}, 1, v{vT1}')
    I(f'v_lshlrev_b32 v{vT3}, 9, v{vT2}')
    I(f'v_bfe_u32 v{vT0}, v{vLane}, 1, 1')
    I(f'v_lshl_add_u32 v{vT3}, v{vT0}, 3, v{vT3}')
    I(f'v_lshlrev_b32 v{vT2}, 2, v{vT2}')
    I(f'v_lshl_add_u32 v{vT0}, v{vHi}, 3, v{vR}')
    I(f'v_xor_b32 v{vT0}, v{vT0}, v{vT2}')
    I(f'v_lshl_add_u32 v{vT3}, v{vT0}, 4, v{vT3}')
    I(f's_add_u32 s{s_t0}, s{s_m0w}, {KREG}')
    I(f's_add_u32 s{s_t1}, s{s_w3a}, 12288')
    I(f'v_add_u32 v{vKt}, s{s_t0}, v{vT3}')
    I(f'v_add_u32 v{vQt}, s{s_t1}, v{vT3}')
    I(f'v_xor_b32 v{vKt+1}, 64, v{vKt}')
    I(f'v_xor_b32 v{vQt+1}, 64, v{vQt}')
    I(f'v_add_u32 v{vVt}, s{s_t0}, v{vL16}')
    V.put(vR); V.put(vNC)
    vH = V.get(2); vO = V.get(2)
    I(f's_and_b32 s{s_t0}, s{s_w}, 1')
    I(f's_lshl_b32 s{s_hb0}, s{s_mt}, 1')
    I(f's_add_u32 s{s_hb0}, s{s_hb0}, s{s_t0}')
    I(f's_xor_b32 s{s_t1}, s{s_hb0}, 1')
    for b, sb in ((0, s_hb0), (1, s_t1)):
        I(f's_mul_i32 s{s_t2}, s{sb}, {112*1024}')
        I(f's_cmp_eq_u32 s{s_ns}, 7')
        I(f's_cselect_b32 s{s_t2}, {OOB}, s{s_t2}')
        I(f'v_add_u32 v{vH+b}, s{s_t2}, v{vL16}')
        I(f's_lshl_b32 s{s_t2}, s{sb}, 15')
        I(f'v_add_u32 v{vO+b}, s{s_t2}, v{vL16}')
    I(f's_add_u32 s{s_f1}, s{s_mt}, s{s_ns}')
    I(f's_and_b32 s{s_f1}, s{s_f1}, 3')
    I(f's_and_b32 s{s_t0}, s{s_mt}, 3')
    I(f's_mul_i32 s{s_t0}, s{s_t0}, 5')
    I(f's_lshr_b32 s{s_t0}, s{s_t0}, 1')
    I(f's_mul_i32 s{s_t1}, s{s_ns}, 3')
    I(f's_lshr_b32 s{s_t1}, s{s_t1}, 1')
    I(f's_add_u32 s{s_f2}, s{s_t0}, s{s_t1}')
    I(f's_sub_u32 s{s_t0}, s{s_f2}, 10')
    I(f's_cmp_ge_u32 s{s_f2}, 10')
    I(f's_cselect_b32 s{s_f2}, s{s_t0}, s{s_f2}')
    I(f's_mul_i32 s{s_ws}, s{s_w}, {448*896}')
    I(f's_lshl_b32 s{s_t0}, s{s_ns}, 7')
    I(f's_add_u32 s{s_ws}, s{s_ws}, s{s_t0}')
    I(f's_add_u32 s{s_we}, s{s_ws}, {4*32*896}')
    I(f's_mul_i32 s{s_wc}, s{s_f1}, {32*896}')
    I(f's_add_u32 s{s_wc}, s{s_wc}, s{s_ws}')
    I(f's_mul_i32 s{s_hs}, s{s_w}, {28*1024}')
    I(f's_add_u32 s{s_hs}, s{s_hs}, {WS_H}')
    I(f's_add_u32 s{s_he}, s{s_hs}, 8192')
    I(f's_lshl_b32 s{s_hc}, s{s_f1}, 11')
    I(f's_add_u32 s{s_hc}, s{s_hc}, s{s_hs}')
    vPq, vPh, vPo, vPl0, vPl1 = [V.get() for _ in range(5)]
    I(f'v_lshrrev_b32 v{vT0}, 4, v{vLane}')
    I(f'v_and_b32 v{vT1}, 15, v{vLane}')
    I(f's_mul_i32 s{s_t0}, s{s_w}, 3')
    I(f's_lshl_b32 s{s_t1}, s{s_i}, 2')
    I(f's_add_u32 s{s_t0}, s{s_t0}, s{s_t1}')
    I(f's_sub_u32 s{s_t0}, s{s_t0}, 8')
    I(f'v_add_u32 v{vT2}, s{s_t0}, v{vT0}')
    I(f'v_max_i32 v{vT2}, 0, v{vT2}')
    I(f'v_lshlrev_b32 v{vT2}, 6, v{vT2}')
    I(f'v_add_u32 v{vT2}, 7, v{vT2}')
    I(f's_lshl_b32 s{s_t1}, s{s_T}, 6')
    I(f'v_mov_b32 v{vT3}, s{s_t1}')
    I(f'v_cmp_eq_u32 vcc, 3, v{vT0}')
    I(f'v_cndmask_b32 v{vT2}, v{vT2}, v{vT3}, vcc')
    I(f'v_add_u32 v{vT2}, v{vT2}, v{vT1}')
    I(f'v_lshlrev_b32 v{vPq}, 2, v{vT2}')
    I(f's_lshl_b32 s{s_t0}, s{s_mt}, 1')
    I(f'v_add_u32 v{vT2}, s{s_t0}, v{vT0}')
    I(f'v_lshl_add_u32 v{vPo}, v{vT2}, 4, v{vT1}')
    I(f'v_lshlrev_b32 v{vPo}, 2, v{vPo}')
    I(f'v_lshlrev_b32 v{vT2}, 6, v{vT2}')
    I(f'v_cmp_eq_u32 vcc, 0, v{vHi}')
    I(f's_mul_i32 s{s_t0}, s{s_w}, 7')
    I(f's_add_u32 s{s_t0}, s{s_t0}, 32')
    I(f'v_cndmask_b32 v{vT2}, v{vT3}, v{vT2}, vcc')
    I(f'v_cndmask_b32 v{vPo}, v{vOOB}, v{vPo}, vcc')
    I(f'v_add_u32 v{vT3}, s{s_t0}, v{vT1}')
    I(f'v_cmp_gt_u32 vcc, 8, v{vT1}')
    I(f'v_cndmask_b32 v{vT3}, 21, v{vT3}, vcc')
    I(f'v_add_u32 v{vT2}, v{vT2}, v{vT3}')
    I(f'v_lshlrev_b32 v{vPh}, 2, v{vT2}')
    I(f's_mul_i32 s{s_t0}, s{s_c}, 28')
    I(f's_lshr_b32 s{s_t1}, s{s_t0}, 6')
    I(f's_lshl_b32 s{s_t1}, 1, s{s_t1}')
    I(f's_add_u32 s{s_t0}, s{s_t0}, 27')
    I(f's_lshr_b32 s{s_t0}, s{s_t0}, 6')
    I(f's_bitset1_b32 s{s_t1}, s{s_t0}')
    I(f's_mul_i32 s{s_t0}, s{s_t1}, 129')
    I(f's_mul_i32 s{sNeedQ}, s{s_t0}, 0x10001')
    I(f's_lshl_b32 s{s_t1}, s{s_t1}, 16')
    I(f's_or_b32 s{sNeedQ+1}, s{s_t0}, s{s_t1}')
    I(f's_cmp_eq_u32 s{s_w}, 3')
    I(f's_mov_b32 s{s_t0}, 0x017c017c')
    I(f's_cselect_b32 s{sNeedL}, 0x01fc01fc, s{s_t0}')
    I(f's_cmp_eq_u32 s{s_ns}, 7')
    I(f's_cselect_b32 s{sNeedL}, 0, s{sNeedL}')
    I(f's_cselect_b32 s{sNeedE}, 0, 0x00030003')
    I(f's_mov_b32 s{sNeedL+1}, 0x100')
    I(f's_mov_b32 s{sNeedE+1}, 0')
    I(f's_lshl_b32 s{s_t0}, s{s_w}, 2')
    I(f's_lshl_b32 s{sNeedO}, 0x000f000f, s{s_t0}')
    I(f's_mov_b32 s{sNeedO+1}, 0')

    def flag_store(soff):
        I(f'v_mov_b32 v{vT0}, 0')
        I('s_mov_b64 exec, 1')
        I(f'buffer_store_dword v{vTag}, v{vT0}, {sr(sWS,4)}, s{soff} offen sc1', tag='flagst')
        I('s_mov_b64 exec, -1')
    def flag_T(idx):
        I(f's_lshl_b32 s{s_t0}, s{s_T}, 8')
        if isinstance(idx, int):
            I(f's_add_u32 s{s_t0}, s{s_t0}, {WS_F + 4*idx}')
        else:
            sg_, add = idx
            I(f's_lshl_b32 s{s_t1}, s{sg_}, 2')
            I(f's_add_u32 s{s_t0}, s{s_t0}, s{s_t1}')
            I(f's_add_u32 s{s_t0}, s{s_t0}, {WS_F + 4*add}')
        flag_store(s_t0)

    def poll_issue(dst, vaddr, base, tag):
        I(f's_movk_i32 s{s_cnt}, {base}')
        I(f'buffer_load_dword v{dst}, v{vaddr}, {sr(sWS,4)}, s{s_cnt} offen sc1', tag=tag)
    def poll_check(dst, vaddr, base, tag, need):
        lab = L('poll'); done = L('pollok')
        E.wait(vm=tag)
        I(f'v_cmp_ne_u32 vcc, v{dst}, v{vTag}')
        I(f's_and_b64 {sr(sP,2)}, vcc, {sr(need,2)}')
        I(f's_cbranch_scc0 {done}')
        sn = E.snapshot()
        I(f's_mov_b32 s{s_cnt}, 0')
        I(f's_movk_i32 s{s_t0}, {base}')
        E.label(lab)
        I(f'buffer_load_dword v{dst}, v{vaddr}, {sr(sWS,4)}, s{s_t0} offen sc1')
        I('s_waitcnt vmcnt(0)')
        I(f'v_cmp_ne_u32 vcc, v{dst}, v{vTag}')
        I(f's_add_u32 s{s_cnt}, s{s_cnt}, 1')
        I(f's_and_b64 {sr(sP,2)}, vcc, {sr(need,2)}')
        I(f's_cbranch_scc0 {done}')
        I(f's_cmp_lt_u32 s{s_cnt}, {SPIN_MAX}')
        I(f's_cbranch_scc1 {lab}')
        E.restore(sn)
        E.label(done)

    def w3_slot(p):
        sl = p % 7
        return (s_w3b, vW3tB, sl * 4096) if sl < 3 else (s_w3a, vW3tA, (sl - 3) * 4096)
    def stream_adv(cur, st, en, step, p, nxt):
        if p in (3, 13): nxt(p)
        elif p < 17:
            I(f's_add_u32 s{cur}, s{cur}, {step}')
            I(f's_cmp_eq_u32 s{cur}, s{en}')
            I(f's_cselect_b32 s{cur}, s{st}, s{cur}')
    def w_next(p):
        if p == 3:
            I(f's_mov_b32 s{s_ws}, s{s_we}')
            I(f's_add_u32 s{s_we}, s{s_ws}, {10*32*896}')
            I(f's_mul_i32 s{s_wc}, s{s_f2}, {32*896}')
        else:
            I(f's_mul_i32 s{s_ws}, s{s_w}, {112*896}')
            I(f's_lshl_b32 s{s_wc}, s{s_ns}, 7')
            I(f's_add_u32 s{s_ws}, s{s_ws}, s{s_wc}')
            I(f's_add_u32 s{s_we}, s{s_ws}, {112*896}')
            I(f's_mul_i32 s{s_wc}, s{s_f1}, {28*896}')
        I(f's_add_u32 s{s_wc}, s{s_wc}, s{s_ws}')
    def h_next(p):
        if p == 3:
            I(f's_mov_b32 s{s_hs}, s{s_he}')
            I(f's_add_u32 s{s_he}, s{s_hs}, 20480')
            I(f's_lshl_b32 s{s_hc}, s{s_f2}, 11')
        else:
            I(f's_lshl_b32 s{s_hs}, s{s_w}, 13')
            I(f's_add_u32 s{s_hs}, s{s_hs}, {WS_O}')
            I(f's_add_u32 s{s_he}, s{s_hs}, 8192')
            I(f's_lshl_b32 s{s_hc}, s{s_f1}, 11')
        I(f's_add_u32 s{s_hc}, s{s_hc}, s{s_hs}')
    def w3_pieces(p):
        sb, _, off = w3_slot(p)
        sd = sW2 if p < 14 else sWO
        def mk(q):
            def f():
                if q == 0: I(f's_add_u32 m0, s{sb}, {off}')
                vo = vW3o + (4 if (q == 3 and p >= 14) else q)
                I(f'buffer_load_dwordx4 v{vo}, {sr(sd,4)}, s{s_wc} offen offset:{q*1024} lds', tag=f'w3_{2*p+q//2}')
                if q == 3: stream_adv(s_wc, s_ws, s_we, (32 if p < 14 else 28) * 896, p, w_next)
            return f
        return [mk(q) for q in range(4)]
    def areg(k, b):
        return ar(8*(k % 28) + 4*b, 4)
    def h_pieces(p):
        vo = vH if p < 14 else vO
        def mk(q):
            def f():
                s_, b = q >> 1, q & 1
                I(f'buffer_load_dwordx4 {areg(2*p+s_, b)}, v{vo+b}, {sr(sWS,4)}, s{s_hc} offen offset:{s_*1024} sc1', tag=f'h{2*p+s_}')
                if q == 3: stream_adv(s_hc, s_hs, s_he, 2048, p, h_next)
            return f
        return [mk(q) for q in range(4)]

    acc = V.get(64, 4); accB = V.get(32, 4); wf = V.get(64, 4); pk = V.get(32, 4)
    def trd(g, idx, va, off):
        return (f'ds_read_b64_tr_b16 {vr(wf+16*(g%4)+2*idx,2)}, v{va} offset:{off}')
    def grpA(g, qq):
        n, sg = g >> 2, g & 3
        rd = [f'ds_read_b128 {ar(4*g,4)}, v{vXr+sg} offset:{(n%3)*16384}']
        mf = []
        for t in range(4):
            for h in range(2):
                rd.append(trd(g, 2*t+h, vWt + (t & 1), (n%4)*16384 + (t>>1)*8192 + sg*2048 + h*512))
            d = vr(acc+16*t, 16); w = vr(wf+16*(g%4)+4*t, 4); x = ar(4*g, 4)
            a, b = (x, w) if (t < 2 or qq) else (w, x)
            mf.append(f'{MF} {d}, {a}, {b}, {"0" if g == 0 else d}')
        return dict(rd=rd, mf=mf, ch=n)
    def grpB(g, j, ch0, ac):
        n = ch0 + (j >> 2); rd = []; mf = []
        for u in range(2):
            ss = 2*j + u; m, sg = ss >> 2, ss & 3
            for t in range(2):
                for h in range(2):
                    rd.append(trd(g, 4*u+2*t+h, vWt + t, (n%4)*16384 + (m&1)*8192 + sg*2048 + h*512))
                d = vr(ac+16*t, 16)
                mf.append(f'{MF} {d}, {vr(wf+16*(g%4)+8*u+4*t,4)}, {ar(4*ss,4)}, {"0" if ss == 0 else d}')
        return dict(rd=rd, mf=mf, ch=n)
    def grpC(g, m, ac):
        n = 7 + (m >> 1); rd = []; mf = []
        for sg in range(4):
            for h in range(2):
                rd.append(trd(g, 2*sg+h, vWc, (n%4)*16384 + (m&1)*8192 + sg*2048 + h*512))
            d = vr(ac, 16)
            mf.append(f'{MF} {d}, {vr(wf+16*(g%4)+4*sg,4)}, {ar(16*m+4*sg,4)}, {"0" if m == 0 and sg == 0 else d}')
        return dict(rd=rd, mf=mf, ch=n)
    def grpG(g, m, ac):
        d = vr(ac, 16)
        return dict(rd=[], ch=10, vm='gf', mf=[f'{MF} {d}, {ar(112+16*m+4*sg,4)}, {ar(16*m+4*sg,4)}, {"0" if m == 0 and sg == 0 else d}' for sg in range(4)])

    vq = []
    eq = []
    def run_groups(G, g0, g1, lastch, hooks):
        for g in range(g0, g1):
            if g in hooks: hooks[g]()
            cur = G[g]
            nxt = G[g+2] if g + 2 < len(G) else None
            rd = list(nxt['rd']) if nxt else []
            bound = nxt is not None and nxt['ch'] != G[g+1]['ch']
            E.wait(lgkm=f'r{g}', vm=cur.get('vm'))
            per = [3, 2, 2, 2] if not bound else [0, 3, 3, 3]
            for m in range(4):
                I(cur['mf'][m])
                if bound and m == 1:
                    n1 = nxt['ch']
                    E.wait(vm=f'c{n1}', lgkm='all')
                    I('s_barrier')
                    if n1 + 2 < 7: vq.extend(x_pieces(n1 + 2))
                    if n1 + 3 <= lastch: vq.extend(w_pieces(n1 + 3))
                for _ in range(per[m]):
                    if rd: I(rd.pop(0), tag=f'r{g+2}')
                if vq and (m & 1): vq.pop(0)()
                for _ in range(P['epi_rate']):
                    if eq: eq.pop(0)()
            assert not rd

    def q_u(s): return lambda: I(s)
    def epi_q(ac, u_sgpr, pkb, tag):
        def base():
            I(f's_mul_i32 s{s_t2}, s{s_T}, 86016')
            I(f's_lshl_b32 s{s_t3}, s{u_sgpr}, 10')
            I(f's_add_u32 s{s_t2}, s{s_t2}, s{s_t3}')
            I(f's_add_u32 s{s_t2}, s{s_t2}, {WS_QKV}')
            I(f's_add_u32 s{s_t3}, s{s_t2}, 43008')
        r = [base]
        for t in range(2):
            for st in range(2):
                d = pkb + 8*t + 4*st
                for k in range(4):
                    s0 = ac + 16*t + 8*st + 2*k
                    r.append(q_u(f'v_cvt_pk_bf16_f32 v{d+k}, v{s0}, v{s0+1}'))
                r.append(lambda d=d, st=st, t=t: I(f'buffer_store_dwordx4 {vr(d,4)}, v{vQs}, {sr(sWS,4)}, s{s_t3 if st else s_t2} offen offset:{t*512} sc1', tag=tag))
        return r
    def epi_h(ac, u_sgpr, pkb, tag, nt=2, half=False):
        def base():
            I(f's_mul_i32 s{s_t2}, s{s_T}, {112*1024}')
            if half:
                I(f's_and_b32 s{s_t3}, s{s_c}, 8')
                I(f's_lshl_b32 s{s_t3}, s{s_t3}, 8')
                I(f's_add_u32 s{s_t3}, s{s_t3}, {27*4096}')
            else:
                I(f's_lshl_b32 s{s_t3}, s{u_sgpr}, 12')
            I(f's_add_u32 s{s_t2}, s{s_t2}, s{s_t3}')
            I(f's_add_u32 s{s_t2}, s{s_t2}, {WS_H}')
        r = [base]
        for f in range(2*nt):
            d = pkb + 4*f
            for k in range(4):
                s0 = ac + 8*f + 2*k
                r.append(q_u(f'v_cvt_pk_bf16_f32 v{d+k}, v{s0}, v{s0+1}'))
            for k in range(4):
                r.append(q_u(f'v_pk_max_i16 v{d+k}, v{d+k}, 0'))
            r.append(lambda d=d, f=f: I(f'buffer_store_dwordx4 {vr(d,4)}, v{vL16}, {sr(sWS,4)}, s{s_t2} offen offset:{f*1024} sc1', tag=tag))
        return r
    cscale = hex(f32bits(math.log2(math.e) / math.sqrt(28.0)))
    def scale_q(cond):
        lab = L('nosc')
        if cond:
            I(f's_cmp_ge_u32 s{s_c}, 7')
            I(f's_cbranch_scc1 {lab}')
        I(f's_mov_b32 s{s_t0}, {cscale}')
        for r in range(32): I(f'v_mul_f32 v{acc+r}, s{s_t0}, v{acc+r}')
        if cond:
            E.label(lab)
            E.hist = E.hist_save
    def a_flag():
        E.wait(vm='ast')
        I(f's_movk_i32 s{s_t0}, {WS_F}')
        I('s_mov_b64 exec, 3')
        I(f'buffer_store_dword v{vTag}, v{vFa}, {sr(sWS,4)}, s{s_t0} offen sc1', tag='flagst')
        I('s_mov_b64 exec, -1')
        stamp(2)
    def mk_tag():
        I(f'v_add_u32 v{vTag}, {hex(TAGINC)}, v{vTag}')
    def start_A(G):
        E.wait(vm='c0')
        stamp(16)
        I('s_barrier')
        for g in (0, 1):
            for r in G[g]['rd']: I(r, tag=f'r{g}')
    def epiA(qq, cond):
        def f():
            stamp(1)
            if cond is not None:
                def sc():
                    E.hist_save = list(E.hist)
                    scale_q(cond)
                eq.append(sc)
            eq.extend(epi_q(acc, s_c, pk, 'ast'))
            eq.extend(epi_q(acc+32, s_a1, pk+16, 'ast') if qq else epi_h(acc+32, s_a1, pk+16, 'ast'))
        return f
    def w3_early():
        for p in range(3): vq.extend(w3_pieces(p))
    def finish_B():
        assert not eq
        while vq: vq.pop(0)()
        stamp(3)
        for f in epi_h(accB, s_bu, pk, 'bst'): f()
        E.wait(lgkm='all')

    I(f's_cmp_lt_u32 s{s_c}, 5')
    I('s_cbranch_scc1 L_qq')
    snap0 = E.snapshot()
    GA = [grpA(g, False) for g in range(28)]
    GL = GA + [grpB(28+j, j, 7, accB) for j in range(14)]
    start_A(GL)
    run_groups(GL, 0, 26, 10, {16: mk_tag})
    I(f's_cmp_eq_u32 s{s_ns}, 7')
    I('s_cbranch_scc1 L_heavy')
    snap1 = E.snapshot(); vq1 = list(vq)
    run_groups(GL, 26, 42, 10, {28: epiA(False, True), 33: w3_early, P['aflag_g']: a_flag})
    finish_B()
    I('s_branch L_p2')
    E.label('L_heavy')
    E.restore(snap1); vq[:] = vq1
    accG = accB + 16
    GH = GA + [grpC(28+m, m, accB) for m in range(7)] + [grpG(35+m, m, accG) for m in range(7)] + [grpB(42+j, j, 11, acc) for j in range(14)]
    def heavy_prep():
        epiA(False, None)()
        def rebase():
            I(f's_lshl_b32 s{s_t0}, s{s_bu}, 7')
            I(f's_mul_i32 s{s_wb}, s{s_w}, {16*3584}')
            I(f's_add_u32 s{s_wb}, s{s_wb}, s{s_t0}')
        assert not vq
        rebase()
        srd(sX, sGP, 896)
        I(f'v_lshlrev_b32 v{vT1}, 4, v{vHi}')
        for m in range(7):
            I(f's_lshl_b32 s{s_u0}, s{s_kx}, 7')
            for sg in range(4):
                I(f'buffer_load_dwordx4 {ar(112+16*m+4*sg,4)}, v{vT1}, {sr(sX,4)}, s{s_u0} offen offset:{32*sg}', tag='gf')
            adv(s_kx)
    def epiC(): eq.extend(epi_h(accB, None, pk, 'cst', nt=1, half=True))
    def epiG():
        def g():
            I(f'v_cvt_pk_bf16_f32 v{vT0}, v{accG}, v{accG}')
            I(f'v_and_b32 v{vT0}, 0xffff0000, v{vT0}')
            I(f'v_mul_f32 v{vT0}, {hex(f32bits(-math.log2(math.e)))}, v{vT0}')
            I(f'v_exp_f32 v{vT0}, v{vT0}')
            I(f'v_add_f32 v{vT0}, 1.0, v{vT0}')
            I(f'v_rcp_f32 v{vT0}, v{vT0}')
            I(f'v_cvt_pk_bf16_f32 v{vT0}, v{vT0}, v{vT0}')
            I(f'v_and_b32 v{vT2}, 0xffff0000, v{vT0}')
            I(f'v_sub_f32 v{vT0}, 1.0, v{vT2}')
            I(f'v_cvt_pk_bf16_f32 v{vT0}, v{vT0}, v{vT0}')
            I(f'v_and_b32 v{vT3}, 0xffff0000, v{vT0}')
            I(f'v_cmp_eq_u32 vcc, 0, v{vHi}')
            I(f'v_lshlrev_b32 v{vT0}, 13, v{vHi}')
            I(f'v_lshl_add_u32 v{vT0}, v{vL31}, 2, v{vT0}')
            I(f'v_cndmask_b32 v{vT2}, v{vT3}, v{vT2}, vcc')
            I(f's_lshl_b32 s{s_t2}, s{s_T}, 7')
            I(f's_add_u32 s{s_t2}, s{s_t2}, {WS_G}')
            I(f'buffer_store_dword v{vT2}, v{vT0}, {sr(sWS,4)}, s{s_t2} offen sc1', tag='gst')
        eq.append(g)
    def cg_flag():
        E.wait(vm='gst')
        flag_T(21)
        I(f's_lshr_b32 s{s_t2}, s{s_c}, 3')
        flag_T((s_t2, 59))
    run_groups(GH, 26, 56, 14, {28: heavy_prep, 35: epiC, 36: a_flag, 43: epiG, 49: cg_flag, 50: w3_early})
    assert not eq
    while vq: vq.pop(0)()
    stamp(3)
    for f in epi_h(acc, s_bu, pk, 'bst'): f()
    E.wait(lgkm='all')
    I('s_branch L_p2')
    E.label('L_qq')
    E.restore(snap0); vq[:] = []
    GQ = [grpA(g, True) for g in range(28)] + [grpB(28+j, j, 7, accB) for j in range(14)]
    start_A(GQ)
    run_groups(GQ, 0, 42, 10, {16: mk_tag, 28: epiA(True, False), 33: w3_early, P['aflag_g']: a_flag})
    finish_B()

    E.label('L_p2')
    E.collapse('pre')
    I('s_barrier')
    for p in range(3, 3 + P['pre_w3']):
        for f in w3_pieces(p): f()
    poll_issue(vPl0, vPq, WS_F, 'pq')
    poll_issue(vPl1, vPh, WS_F, 'pe')
    V.put(acc, 64); V.put(accB, 32); V.put(wf, 64)
    for r_, n_ in ((vXo, 4), (vWq, 2), (vW1, 2), (vWa1, 2), (vXr, 4), (vWt, 2), (vWc, 1), (vQs, 1), (vFa, 1)): V.put(r_, n_)
    keep = (s_bu,)
    for s_ in p1s:
        if s_ not in keep: S.put(s_)
    for s_ in (sX, sWQ, sW1, sA1): S.put(s_, 4)
    S.put(sGP, 2)
    sMASK = [S.get(2, 2) for _ in range(16)]
    one4 = V.get(4, 4); vBM = V.get(8)
    for k in range(4): I(f'v_mov_b32 v{one4+k}, 0x3f803f80')
    I(f'v_lshrrev_b32 v{vT0}, 2, v{vLane}')
    I(f'v_lshlrev_b32 v{vT0}, 9, v{vT0}')
    I(f'v_and_b32 v{vT2}, 3, v{vLane}')
    I(f'v_lshl_add_u32 v{vT0}, v{vT2}, 4, v{vT0}')
    I(f's_mul_i32 s{s_t2}, s{s_w}, 6144')
    I(f's_add_u32 s{s_t0}, s{s_t2}, {VREG + 448}')
    I(f'v_add_u32 v{vT0}, s{s_t0}, v{vT0}')
    I('s_mov_b32 exec_hi, 0xffff')
    I(f'ds_write_b128 v{vT0}, {vr(one4,4)}', tag='ones')
    I('s_mov_b64 exec, -1')
    I(f'v_lshlrev_b32 v{vT0}, 2, v{vHi}')
    I(f'v_sub_u32 v{vT0}, v{vL31}, v{vT0}')
    for r in range(16):
        I(f'v_cmp_le_i32 {sr(sMASK[r],2)}, {8*(r>>2)+(r&3)}, v{vT0}')
    I(f'v_mov_b32 v{vT2}, 0xffff')
    I(f'v_mov_b32 v{vT3}, 0xffff0000')
    for k in range(8):
        I(f'v_cndmask_b32 v{vT0}, 0, v{vT2}, {sr(sMASK[2*k],2)}')
        I(f'v_cndmask_b32 v{vT1}, 0, v{vT3}, {sr(sMASK[2*k+1],2)}')
        I(f'v_or_b32 v{vBM+k}, v{vT0}, v{vT1}')
    E.wait(vm='pre')
    flag_T((s_bu, 32))
    V.put(pk, 32)
    stamp(4)
    poll_check(vPl0, vPq, WS_F, 'pq', sNeedQ)
    stamp(5)
    I(f's_mul_i32 s{s_t3}, s{s_c}, 448')
    I(f's_add_u32 s{s_t3}, s{s_t3}, {WS_QKV}')
    I(f's_mul_i32 s{s_t1}, s{s_T}, 86016')
    I(f's_add_u32 s{s_t1}, s{s_t1}, s{s_t3}')
    I(f's_add_u32 m0, s{s_w3a}, 12288')
    for st in range(2):
        I(f'buffer_load_dwordx4 v{vKo+st}, {sr(sWS,4)}, s{s_t1} offen offset:{st*1024} sc1 lds', tag='qk')
    s_tp = s_bu
    I(f's_mul_i32 s{s_tp}, s{s_w}, 3')
    I(f's_lshl_b32 s{s_t1}, s{s_i}, 2')
    I(f's_add_u32 s{s_tp}, s{s_tp}, s{s_t1}')
    I(f's_sub_u32 s{s_tp}, s{s_tp}, 8')
    for isv in range(2):
        if isv:
            I('s_mov_b32 exec_lo, 0x0fffffff')
            I('s_mov_b32 exec_hi, 0x0fffffff')
        for j in range(3):
            I(f's_add_i32 s{s_t0}, s{s_tp}, {j}')
            I(f's_max_i32 s{s_t0}, s{s_t0}, 0')
            I(f's_mul_i32 s{s_t0}, s{s_t0}, 86016')
            I(f's_add_u32 s{s_t0}, s{s_t0}, s{s_t3}')
            I(f's_add_u32 s{s_t1}, s{s_t0}, {7168 * (1 + isv)}')
            I(f's_add_u32 m0, s{s_t2}, {(VREG if isv else KREG) + j*2048}')
            for st in range(2):
                I(f'buffer_load_dwordx4 v{(vVo if isv else vKo)+st}, {sr(sWS,4)}, s{s_t1} offen offset:{st*1024} sc1 lds', tag='v' if isv else 'qk')
    I('s_mov_b64 exec, -1')
    poll_check(vPl1, vPh, WS_F, 'pe', sNeedE)
    for p in range(3 + P['pre_w3'], 6): vq.extend(w3_pieces(p))
    for p in range(0, 2): vq.extend(h_pieces(p))
    for _ in range(6): vq.pop(0)()
    E.wait(vm='qk')
    I(f's_cmp_ge_i32 s{s_tp}, 0')
    I('s_cbranch_scc1 L_valid')
    sn = E.snapshot()
    I(f'v_lshrrev_b32 v{vT0}, 2, v{vLane}')
    I(f'v_and_b32 v{vT1}, 3, v{vLane}')
    I(f'v_lshlrev_b32 v{vT2}, 2, v{vT1}')
    I(f'v_xor_b32 v{vT2}, 28, v{vT2}')
    I(f'v_lshlrev_b32 v{vT2}, 4, v{vT2}')
    I(f'v_lshl_add_u32 v{vT2}, v{vLane}, 9, v{vT2}')
    I(f's_add_u32 s{s_t0}, s{s_t2}, {KREG}')
    I(f'v_add_u32 v{vT2}, s{s_t0}, v{vT2}')
    I(f'v_add_u32 v{vT0}, s{s_tp}, v{vT0}')
    I(f'v_cmp_gt_i32 vcc, 0, v{vT0}')
    I(f's_and_b64 exec, vcc, 0xfff')
    I(f'ds_write_b128 v{vT2}, {vr(one4,4)}')
    I('s_mov_b64 exec, -1')
    E.restore(sn)
    E.label('L_valid')
    I('s_waitcnt lgkmcnt(0)'); E.lgkm = []
    I('s_barrier')
    stamp(6)
    KF = V.get(72, 4); Sx = V.get(48, 4); Mx = V.get(16, 4); NM = V.get(16, 4); O = V.get(16, 4); qf = V.get(8, 4)
    vM, vM2, vG = V.get(), V.get(), V.get()
    vOm = V.get(2)
    VF = 224
    t0 = E.t
    last = [E.t]
    events = []
    def tick():
        while events and E.t - t0 >= events[0][0]: events.pop(0)[1]()
        if vq and E.t - last[0] >= P['vpace']:
            last[0] = E.t; vq.pop(0)()
    def J(s, tag=None):
        I(s, tag); tick()
    def late_issue(): poll_issue(vPl1, vPh, WS_F, 'pl')
    def late_check():
        poll_check(vPl1, vPh, WS_F, 'pl', sNeedL)
        stamp(9)
        I(f'v_lshlrev_b32 v{vT0}, 2, v{vL31}')
        I(f's_lshl_b32 s{s_t0}, s{s_T}, 7')
        I(f's_add_u32 s{s_t0}, s{s_t0}, {WS_G}')
        I(f'buffer_load_dword v{vG}, v{vT0}, {sr(sWS,4)}, s{s_t0} offen sc1', tag='g')
        I(f's_lshl_b32 s{s_t0}, s{s_hb0}, 7')
        I(f's_add_u32 s{s_t0}, s{s_t0}, {WS_G + 0x2000}')
        I(f'buffer_load_dword v{vOm}, v{vT0}, {sr(sWS,4)}, s{s_t0} offen sc1', tag='g')
        I(f's_xor_b32 s{s_t0}, s{s_t0}, 128')
        I(f'buffer_load_dword v{vOm+1}, v{vT0}, {sr(sWS,4)}, s{s_t0} offen sc1', tag='g')
        for p in range(4, 14): vq.extend(h_pieces(p))
    events += [(P['latepoll_t'], late_issue), (P['latechk_t'], late_check)]
    def kread(dst, va, off, tag):
        for dl in range(2):
            for rho in range(2):
                J(f'ds_read_b64_tr_b16 {vr(dst+4*dl+2*rho,2)}, v{va+rho} offset:{off+dl*256}', tag=tag)
    order = [0, 8, 1, 2, 3, 4, 5, 6, 7]
    kread(qf, vQt, 0, 'q')
    for j in order[:2]: kread(KF+8*j, vKt, j*2048, f'k{j}')
    E.wait(lgkm='q')
    I(f'v_or_b32 v{qf+6}, v{qf+6}, v{vQpad}')
    vq.extend(w3_pieces(6))
    for p in range(2, 4): vq.extend(h_pieces(p))
    def sdst(idx):
        return Mx if idx == 1 else Sx + 16 * ([0, None, 1, 2, 0, 1, 2, 0, 1][idx])
    firstmax = [True]
    def maxops(b):
        r = []
        for k in range(0, 16, 4):
            if firstmax[0]:
                r += [f'v_max_f32 v{vM}, v{b}, v{b+1}', f'v_max_f32 v{vM2}, v{b+2}, v{b+3}']; firstmax[0] = False
            else:
                r += [f'v_max3_f32 v{vM}, v{b+k}, v{b+k+1}, v{vM}', f'v_max3_f32 v{vM2}, v{b+k+2}, v{b+k+3}, v{vM2}']
        return r
    fq = []
    for idx, j in enumerate(order):
        d = vr(sdst(idx), 16)
        if idx == 3:
            fq += [f'v_cndmask_b32 v{Mx+r}, v{Sx+r}, v{Mx+r}, {sr(sMASK[r],2)}' for r in range(16)]
        if idx == 4:
            while fq: J(fq.pop(0))
            fq += maxops(Mx)
        if idx >= 4: fq += maxops(sdst(idx - 2))
        if idx >= 5:
            pass
        E.wait(lgkm=f'k{j}')
        for dl in range(2):
            J(f'{MF} {d}, {vr(KF+8*j+4*dl,4)}, {vr(qf+4*dl,4)}, {"0" if dl == 0 else d}')
            if idx + 2 < 9:
                jn = order[idx+2]
                for rho in range(2):
                    J(f'ds_read_b64_tr_b16 {vr(KF+8*jn+4*dl+2*rho,2)}, v{vKt+rho} offset:{jn*2048+dl*256}', tag=f'k{jn}')
            n = (len(fq) + 1) // 2 if dl == 0 else len(fq)
            for _ in range(n): J(fq.pop(0))
    E.wait(vm='v')
    I('s_barrier')
    def vread(j, slot):
        for st in range(2):
            J(f'ds_read_b128 {ar(VF+8*slot+4*st,4)}, v{vVt} offset:{VREG-KREG+j*2048+st*1024}', tag=f'v{j}')
    vslot = {8: 0, 0: 1, 1: 2, 2: 3, 3: 0, 4: 1, 5: 2, 6: 3, 7: 0}
    for j in (8, 0, 1, 2): vread(j, vslot[j])
    for s_ in maxops(sdst(7)) + maxops(sdst(8)): J(s_)
    J(f'v_max_f32 v{vM}, v{vM}, v{vM2}')
    J(f'v_mov_b32 v{vM2}, v{vM}')
    J(f'v_permlane32_swap_b32 v{vM}, v{vM2}')
    J(f'v_max_f32 v{vM}, v{vM}, v{vM2}')
    J(f'v_sub_f32 v{NM}, 0, v{vM}')
    J(f'v_sub_f32 v{NM+1}, 0, v{vM}')
    for k in range(2, 16, 2): J(f'v_mov_b64 {vr(NM+k,2)}, {vr(NM,2)}')
    def qk2(j):
        d = vr(Sx + 16*(j % 3), 16)
        return [f'{MF} {d}, {vr(KF+8*j,4)}, {vr(qf,4)}, {vr(NM,16)}', f'{MF} {d}, {vr(KF+8*j+4,4)}, {vr(qf+4,4)}, {d}']
    firstpv = [True]
    def pv(j, preg, st):
        d = vr(O, 16)
        E.wait(lgkm=f'v{j}')
        J(f'{MF} {d}, {ar(VF+8*vslot[j]+4*st,4)}, {vr(preg,4)}, {"0" if firstpv[0] else d}')
        firstpv[0] = False
    mq = qk2(1) + qk2(2)
    J(mq.pop(0))
    pend = []
    for j in [8, 1, 2, 3, 4, 5, 6, 7]:
        b = Mx if j == 8 else Sx + 16*(j % 3)
        if j != 8 and j + 2 <= 7: nq = qk2(j + 2)
        else: nq = []
        for st in range(2):
            bb = b + 8*st
            if j == 8:
                for k in range(8): J(f'v_sub_f32 v{bb+k}, v{bb+k}, v{vM}')
                if mq: J(mq.pop(0))
            for k in range(8):
                J(f'v_exp_f32 v{bb+k}, v{bb+k}')
                if k == 1 and pend: pv(*pend.pop(0))
                if k == 5:
                    if pend: pv(*pend.pop(0))
                    elif mq: J(mq.pop(0))
                    elif nq: J(nq.pop(0))
            for k in range(4): J(f'v_cvt_pk_bf16_f32 v{bb+k}, v{bb+2*k}, v{bb+2*k+1}')
            if j == 8:
                for k in range(4):
                    J(f'v_bfi_b32 v{bb+4+k}, v{vBM+4*st+k}, 0, v{bb+k}')
                    J(f'v_and_b32 v{bb+k}, v{vBM+4*st+k}, v{bb+k}')
                pend += [(8, bb, st), (0, bb+4, st)]
            else:
                pend.append((j, bb, st))
        while mq: J(mq.pop(0))
        while nq: J(nq.pop(0))
        if j == 1: vread(3, vslot[3]); vread(4, vslot[4])
        elif j in (2, 3, 4): vread(j + 3, vslot[j + 3])
    while pend: pv(*pend.pop(0))
    while events: events.pop(0)[1]()
    I(f's_lshl_b32 s{s_t2}, s{s_T}, 15')
    I(f's_lshl_b32 s{s_t3}, s{s_c}, 11')
    I(f's_add_u32 s{s_t2}, s{s_t2}, s{s_t3}')
    I(f's_add_u32 s{s_t2}, s{s_t2}, {WS_O}')
    for _ in range(2):
        if vq: vq.pop(0)()
    I(f'v_cmp_eq_u32 vcc, 0, v{vHi}')
    I(f'v_mov_b32 v{vM}, v{O+12}')
    I(f'v_mov_b32 v{vM2}, v{O+12}')
    I(f'v_permlane32_swap_b32 v{vM}, v{vM2}')
    I(f'v_rcp_f32 v{vM2}, v{vM2}')
    E.wait(vm='g')
    I(f'v_mul_f32 v{vM2}, v{vM2}, v{vG}')
    I(f'v_cndmask_b32 v{vM}, 0, v{vM2}, vcc')
    for st in range(2):
        for r in range(8*st, 8*st+8): I(f'v_mul_f32 v{O+r}, v{O+r}, v{vM if r >= 12 else vM2}')
        for k in range(4): I(f'v_cvt_pk_bf16_f32 v{qf+4*st+k}, v{O+8*st+2*k}, v{O+8*st+2*k+1}')
        I(f'buffer_store_dwordx4 {vr(qf+4*st,4)}, v{vL16}, {sr(sWS,4)}, s{s_t2} offen offset:{st*1024} sc1', tag='ost')
    stamp(7)
    def o_flag():
        E.wait(vm='ost')
        I(f's_lshl_b32 s{s_t0}, s{s_T}, 4')
        I(f's_add_u32 s{s_t0}, s{s_t0}, s{s_c}')
        I(f's_lshl_b32 s{s_t0}, s{s_t0}, 2')
        I(f's_add_u32 s{s_t0}, s{s_t0}, {WS_FO}')
        flag_store(s_t0)
        stamp(8)
    I(f's_cmp_eq_u32 s{s_ns}, 7')
    I('s_cbranch_scc1 L_idle')
    snap_idle = E.snapshot()
    for r_, n_ in ((KF, 72), (Sx, 48), (Mx, 16), (NM, 16), (O, 16), (one4, 4), (vBM, 8)): V.put(r_, n_)

    ac3 = V.get(64, 4); bf = V.get(24, 4); rb = V.get(48, 4)
    def breads(k):
        _, va, off = w3_slot(k >> 1)
        return [f'ds_read_b64_tr_b16 {vr(bf+8*(k%3)+4*a+2*h,2)}, v{va+a} offset:{off+(k&1)*2048+h*1024}' for a in range(2) for h in range(2)]
    assert E.cnt.get('w3_13', 0) == 2
    sys.stderr.write(f'P2 est cycles {E.t - t0}, h pieces left {len(vq)}\n')
    hq = list(vq); vq[:] = []
    wq = []
    for k in (0, 1):
        E.wait(vm=f'w3_{k}')
        for r in breads(k): I(r, tag=f'b{k}')
    for k in range(36):
        if k == 28:
            for e in range(4):
                for r in range(16): I(f'v_mul_f32 v{ac3+16*e+r}, v{ac3+16*e+r}, v{vOm+(e&1)}')
        while E.cnt.get(f'h{k}', 0) < 2: hq.pop(0)()
        E.wait(vm=f'h{k}', lgkm=f'b{k}')
        if k & 1 and (k >> 1) + 7 < 18: wq.extend(w3_pieces((k >> 1) + 7))
        rd = []
        for m in range(4):
            a, b = m >> 1, m & 1
            d = vr(ac3+32*a+16*b, 16)
            I(f'{MF} {d}, {vr(bf+8*(k%3)+4*a,4)}, {areg(k,b)}, {"0" if k == 0 else d}')
            if m == 1 and k + 2 < 36:
                while E.cnt.get(f'w3_{k+2}', 0) < 2: wq.pop(0)()
                E.wait(vm=f'w3_{k+2}'); rd = breads(k + 2)
            for _ in range(2):
                if rd: I(rd.pop(0), tag=f'b{k+2}')
            q = (wq if (m & 1) == 0 else hq)
            if not q: q = hq if q is wq else wq
            if q: q.pop(0)()
        if k == P.get('oflag_k', 5): o_flag()
        if k == P['opoll_k']: poll_issue(vPl0, vPo, WS_FO, 'po')
        if k == P['ochk_k']:
            assert not hq
            stamp(10)
            poll_check(vPl0, vPo, WS_FO, 'po', sNeedO)
            stamp(11)
            for p in range(14, 18): hq.extend(h_pieces(p))
        if k == 8: I('s_barrier')
    stamp(12)
    vRw = V.get(3); vRr = V.get()
    for e in range(1, 4):
        I(f's_xor_b32 s{s_t0}, s{s_w}, {e}')
        I(f's_mul_i32 s{s_t0}, s{s_t0}, 12288')
        I(f's_add_u32 s{s_t0}, s{s_t0}, {RED + (e-1)*4096}')
        I(f'v_add_u32 v{vRw+e-1}, s{s_t0}, v{vL16}')
    I(f's_mul_i32 s{s_t0}, s{s_w}, 12288')
    I(f's_add_u32 s{s_t0}, s{s_t0}, {RED}')
    I(f'v_add_u32 v{vRr}, s{s_t0}, v{vL16}')
    for e in (1, 2, 3):
        for q in range(4):
            I(f'ds_write_b128 v{vRw+e-1}, {vr(ac3+16*e+4*q,4)} offset:{q*1024}', tag='red')
    I(f'v_mul_u32_u24 v{vT0}, 896, v{vL31}')
    I(f'v_lshl_add_u32 v{vT0}, v{vHi}, 4, v{vT0}')
    I(f's_mul_i32 s{s_t0}, s{s_hb0}, {32*896}')
    I(f's_lshl_b32 s{s_t1}, s{s_ns}, 7')
    I(f's_add_u32 s{s_t0}, s{s_t0}, s{s_t1}')
    I(f's_lshr_b32 s{s_t1}, s{s_w}, 1')
    I(f's_lshl_b32 s{s_t1}, s{s_t1}, 6')
    I(f's_add_u32 s{s_t0}, s{s_t0}, s{s_t1}')
    E.wait(lgkm='all')
    I('s_barrier')
    for q in range(4):
        for e in range(3):
            I(f'ds_read_b128 {vr(rb+16*e+4*q,4)}, v{vRr} offset:{e*4096+q*1024}', tag=f'rr{q}')
    for q in range(4):
        E.wait(lgkm=f'rr{q}')
        for r in range(4*q, 4*q+4):
            I(f'v_add_f32 v{ac3+r}, v{ac3+r}, v{rb+r}')
            I(f'v_add_f32 v{rb+16+r}, v{rb+16+r}, v{rb+32+r}')
        for r in range(4*q, 4*q+4):
            I(f'v_add_f32 v{ac3+r}, v{ac3+r}, v{rb+16+r}')
        for k in range(2*q, 2*q+2): I(f'v_cvt_pk_bf16_f32 v{bf+k}, v{ac3+2*k}, v{ac3+2*k+1}')
        if q & 1:
            p = q >> 1
            I(f'v_permlane32_swap_b32 v{bf+4*p}, v{bf+4*p+2}')
            I(f'v_permlane32_swap_b32 v{bf+4*p+1}, v{bf+4*p+3}')
            I(f'buffer_store_dwordx4 {vr(bf+4*p,4)}, v{vT0}, {sr(sOUT,4)}, s{s_t0} offen offset:{32*p}', tag='out')
    E.label('L_fin')
    if stamps:
        I('s_waitcnt vmcnt(0)')
        stamp(13)
    if stamps and 'diag' in P:
        k = P['diag']
        I(f'v_readlane_b32 s{s_t0}, v{vStamp}, 15')
        if k == 99:
            I(f's_getreg_b32 s{s_t1}, hwreg(HW_REG_XCC_ID, 0, 4)')
            I(f's_sub_u32 s{s_t1}, s{s_t1}, s2')
            I(f's_and_b32 s{s_t1}, s{s_t1}, 7')
            I(f's_mul_i32 s{s_t1}, s{s_t1}, 500')
        else:
            I(f'v_readlane_b32 s{s_t1}, v{vStamp}, {k}')
            I('s_nop 4')
            I(f's_cmp_eq_u32 s{s_t1}, 0')
            I(f's_cselect_b32 s{s_t1}, s{s_t0}, s{s_t1}')
            I(f's_sub_u32 s{s_t1}, s{s_t1}, s{s_t0}')
            I(f's_lshl_b32 s{s_t1}, s{s_t1}, 2')
        I(f's_add_u32 s{s_t1}, s{s_t1}, 6000')
        E.label('L_pad')
        I(f's_memrealtime {sr(sTM,2)}')
        I('s_waitcnt lgkmcnt(0)')
        I(f's_sub_u32 s{s_t2}, s{sTM}, s{s_t0}')
        I(f's_cmp_lt_u32 s{s_t2}, s{s_t1}')
        I('s_cbranch_scc1 L_pad')
    elif stamps:
        I(f's_lshl_b32 s{s_t0}, s2, 2')
        I(f's_add_u32 s{s_t0}, s{s_t0}, s{s_w}')
        I(f's_lshl_b32 s{s_t0}, s{s_t0}, 8')
        I(f's_add_u32 s{s_t0}, s{s_t0}, {WS_STAMP}')
        I(f'v_lshlrev_b32 v{vT0}, 2, v{vLane}')
        I(f'buffer_store_dword v{vStamp}, v{vT0}, {sr(sWS,4)}, s{s_t0} offen')
        I(f's_load_dwordx2 {sr(sW2,2)}, s[0:1], 64')
        E.wait(lgkm='all')
        I(f's_and_b32 s{sW2+1}, s{sW2+1}, 0xffff')
        I(f's_mov_b32 s{sW2+2}, 64')
        I(f'v_readlane_b32 s{s_t0}, v{vStamp}, 16')
        I(f'v_not_b32 v{vT1}, v{vStamp}')
        I(f'v_cmp_eq_u32 vcc, 15, v{vLane}')
        I(f'v_writelane_b32 v{vStamp}, s{s_t0}, 14')
        I(f'v_cndmask_b32 v{vStamp}, v{vStamp}, v{vT1}, vcc')
        E.raw(f'    buffer_atomic_umax v{vStamp}, v{vT0}, {sr(sW2,4)}, 0 offen')
    E.label('L_end')
    I('s_endpgm')
    E.label('L_idle')
    E.restore(snap_idle)
    o_flag()
    I(f's_xor_b32 s{s_t0}, s2, 224')
    I(f's_or_b32 s{s_t0}, s{s_t0}, s{s_w}')
    I(f's_cmp_lg_u32 s{s_t0}, 0')
    I('s_cbranch_scc1 L_fin')
    I(f's_mov_b32 s{s_cnt}, 0')
    I(f's_movk_i32 s{s_t0}, {WS_FO}')
    E.label('L_epoch')
    for q in range(4):
        I(f'buffer_load_dwordx4 {vr(ac3+4*q,4)}, v{vL16}, {sr(sWS,4)}, s{s_t0} offen offset:{q*1024} sc1')
    I('s_waitcnt vmcnt(0)')
    for r in range(16): I(f'v_xor_b32 v{ac3+r}, v{ac3+r}, v{vTag}')
    for r in range(1, 16, 2):
        I(f'v_or3_b32 v{ac3}, v{ac3}, v{ac3+r}, v{ac3+min(r+1,15)}')
    I(f'v_cmp_ne_u32 vcc, 0, v{ac3}')
    I(f's_add_u32 s{s_cnt}, s{s_cnt}, 1')
    I(f's_and_b64 {sr(sP,2)}, vcc, vcc')
    I('s_cbranch_scc0 L_epoch_ok')
    I('s_sleep 8')
    I(f's_cmp_lt_u32 s{s_cnt}, {SPIN_MAX}')
    I('s_cbranch_scc1 L_epoch')
    E.label('L_epoch_ok')
    I(f's_mov_b32 s{s_t0}, 0')
    flag_store(s_t0)
    I('s_branch L_fin')

    head = open('cdna_kernels/' + NAME + '.s.ref').read().split('; Override')[0]
    out = head + f'; @launch grid=(256,1,1) block=(256,1,1) lds={LDS_BYTES}\n'
    out += f'''.amdgcn_target "amdgcn-amd-amdhsa--gfx950"
.text
.globl {NAME}_kernel
.p2align 8
.type {NAME}_kernel,@function
'''
    out += E.text()
    out += f'''.fill 12288, 4, 0xBF810000
.section .rodata,"a"
.p2align 6
.amdhsa_kernel {NAME}_kernel
  .amdhsa_next_free_vgpr 512
  .amdhsa_next_free_sgpr 102
  .amdhsa_accum_offset 256
  .amdhsa_group_segment_fixed_size 0
  .amdhsa_kernarg_size 80
  .amdhsa_user_sgpr_count 2
  .amdhsa_user_sgpr_kernarg_segment_ptr 1
  .amdhsa_system_sgpr_workgroup_id_x 1
.end_amdhsa_kernel
'''
    sys.stderr.write(f'instrs {E.nins} vgpr_hi {V.hi} sgpr_hi {S.hi}\n')
    return out

if __name__ == '__main__':
    st = 'stamps' in sys.argv[2:]
    kw = {a.split('=')[0]: int(a.split('=')[1]) for a in sys.argv[2:] if '=' in a}
    txt = generate(st, **kw)
    open(sys.argv[1], 'w').write(txt)
```

```python
import sys, math, struct
from asmlib import Emitter, Alloc

NAME = 'gated_mix__sliding_block__dense_activation_relu__prompt'
WS_F = 0x1000
WS_FO = 0x5000
WS_G = 0x6000
WS_STAMP = 0x10000
WS_QKV = 0x100000
WS_H = 0x700000
WS_O = 0xE00000
WS_SIZE = 0x1000000
XRING = 65536
KREG = 65536
VREG = KREG + 24576
RED = 65536
R2 = 114688
LDS_BYTES = 163840
OOB = 0x7F000000
SPIN_MAX = 20000
TAGINC = 0x9E3779B9

def f32bits(x): return struct.unpack('<I', struct.pack('<f', x))[0]

DEF = dict(rot=1, pq_last=0, pq_keep=0, aflag_g=22, w3_g=30, pq_g=32, pc_g=36, qq_w3_g=34, qq_aflag_g=38, vpace=72, vchk_t=500, f2_t=2400,
           epoll_t=1600, echk_t=2300, lchk_k=0, oflag_k=5, opoll_k=18, ochk_k=22, epi_rate=6)

def generate(stamps=False, **kw):
    P = dict(DEF); P.update(kw)
    E = Emitter(); I = E.I
    V = Alloc(256, 1)
    S = Alloc(102, 3)
    def vr(i, n): return f'v[{i}:{i+n-1}]'
    def ar(i, n): return f'a[{i}:{i+n-1}]'
    def sr(i, n): return f's[{i}:{i+n-1}]'
    uid = [0]
    def L(p):
        uid[0] += 1; return f'L_{p}_{uid[0]}'
    MF = 'v_mfma_f32_32x32x16_bf16'

    sX, sWQ, sW1, sA1, sW2, sWO, sWS, sOUT = [S.get(4, 4) for _ in range(8)]
    kp = S.get(20, 4)
    s_w, s_i, s_c, s_mt, s_ns, s_T, s_t0, s_t1, s_t2, s_t3, s_cnt = [S.get() for _ in range(11)]
    p1s = [S.get() for _ in range(15)]
    s_kx, s_kw, s_xb, s_wa0, s_wa1, s_wb, s_m0x, s_m0w, s_u0, s_u1, s_qq, s_a1, s_bu, s_rho, s_rsA1 = p1s
    s_tp = S.get()
    sP = S.get(2, 2); sGP = S.get(2, 2); sTM = S.get(2, 2)

    vStamp = V.get()
    def stamp(k):
        if not stamps: return
        I(f'{"s_memtime" if P.get("cyc") else "s_memrealtime"} {sr(sTM,2)}')
        E.wait(lgkm='all')
        I(f'v_writelane_b32 v{vStamp}, s{sTM}, {k}')

    E.raw(f'{NAME}_kernel:')
    I('s_cmp_ge_u32 s2, 256')
    I('s_cbranch_scc1 L_end')
    I(f's_load_dwordx16 {sr(kp,16)}, s[0:1], 0')
    I(f's_load_dwordx4 {sr(kp+16,4)}, s[0:1], 64')
    if stamps: I(f'{"s_memtime" if P.get("cyc") else "s_memrealtime"} {sr(sTM,2)}')
    vT0, vT1, vT2, vT3 = [V.get() for _ in range(4)]
    vLane, vHi, vL31, vCode = V.get(), V.get(), V.get(), V.get()
    I(f's_getpc_b64 {sr(sP,2)}')
    I(f's_lshr_b32 s{s_t1}, s2, 3')
    I(f'v_lshrrev_b32 v{vT0}, 6, v0')
    I(f'v_and_b32 v{vT1}, 3, v0')
    I(f'v_readfirstlane_b32 s{s_w}, v{vT0}')
    I(f'v_lshl_add_u32 v{vT1}, v{vT0}, 2, v{vT1}')
    I(f's_lshl_b32 s{s_t2}, s{s_t1}, 11')
    I(f'v_lshl_add_u32 v{vT1}, v{vT1}, 7, s{s_t2}')
    I(f'global_load_dword v{vCode}, v{vT1}, {sr(sP,2)}', tag='code')
    I(f'v_and_b32 v{vLane}, 63, v0')
    I(f's_and_b32 s{s_t0}, s2, 7')
    I(f's_and_b32 s{s_t2}, s{s_t1}, 3')
    I(f's_lshr_b32 s{s_ns}, s{s_t1}, 2')
    I(f's_lshl_b32 s{s_mt}, s{s_t0}, 2')
    I(f's_add_u32 s{s_mt}, s{s_mt}, s{s_t2}')
    I(f's_and_b32 s{s_i}, s{s_mt}, 15')
    I(f's_lshr_b32 s{s_t3}, s{s_t0}, 2')
    I(f's_lshl_b32 s{s_c}, s{s_t3}, 3')
    I(f's_add_u32 s{s_c}, s{s_c}, s{s_ns}')
    I(f's_lshl_b32 s{s_rho}, s{s_t2}, 1')
    I(f's_add_u32 s{s_rho}, s{s_rho}, s{s_ns}')
    I(f's_sub_u32 s{s_t0}, s{s_rho}, 7')
    I(f's_cmp_ge_u32 s{s_rho}, 7')
    I(f's_cselect_b32 s{s_rho}, s{s_t0}, s{s_rho}')
    if not P['rot']: I(f's_mov_b32 s{s_rho}, 0')
    I(f's_mov_b32 s{s_kx}, s{s_rho}')
    I(f's_mov_b32 s{s_kw}, s{s_rho}')
    I(f's_lshl_b32 s{s_T}, s{s_i}, 2')
    I(f's_add_u32 s{s_T}, s{s_T}, s{s_w}')
    def unit_of(dst, e):
        I(f's_and_b32 s{s_t0}, s{e}, 3')
        I(f's_mul_i32 s{s_t0}, s{s_t0}, 7')
        I(f's_lshr_b32 s{dst}, s{e}, 2')
        I(f's_add_u32 s{dst}, s{dst}, s{s_t0}')
    vXo = V.get(4); vWq = V.get(2); vW1 = V.get(2); vWl = V.get(); vL8 = V.get()
    I(f'v_lshrrev_b32 v{vL8}, 3, v{vLane}')
    I(f'v_mul_u32_u24 v{vT2}, 896, v{vL8}')
    I(f'v_lshrrev_b32 v{vT0}, 4, v{vLane}')
    I(f'v_and_b32 v{vT3}, 7, v{vLane}')
    I(f'v_xor_b32 v{vT3}, v{vT3}, v{vT0}')
    I(f'v_lshl_add_u32 v{vXo}, v{vT3}, 4, v{vT2}')
    I(f'v_add_u32 v{vXo+2}, {2*(7168-1024)}, v{vXo}')
    I(f'v_xor_b32 v{vT3}, 4, v{vT3}')
    I(f'v_lshl_add_u32 v{vXo+1}, v{vT3}, 4, v{vT2}')
    I(f'v_add_u32 v{vXo+3}, {3*(7168-1024)}, v{vXo+1}')
    I(f'v_add_u32 v{vXo+1}, {7168-1024}, v{vXo+1}')
    I(f'v_and_b32 v{vT0}, 1, v{vT0}')
    I(f'v_lshlrev_b32 v{vT0}, 2, v{vT0}')
    I(f'v_and_b32 v{vT3}, 7, v{vLane}')
    I(f'v_xor_b32 v{vT3}, v{vT3}, v{vT0}')
    I(f'v_lshlrev_b32 v{vWl}, 4, v{vT3}')
    I(f'v_mul_u32_u24 v{vT2}, 2688, v{vL8}')
    I(f'v_add_u32 v{vWq}, v{vT2}, v{vWl}')
    I(f'v_add_u32 v{vWq+1}, {8*2688-1024}, v{vWq}')
    I(f's_mul_i32 s{s_xb}, s{s_T}, {32*896}')
    I(f's_lshl_b32 s{s_m0w}, s{s_w}, 11')
    I(f's_lshl_b32 s{s_m0x}, s{s_w}, 12')
    I(f's_add_u32 s{s_m0x}, s{s_m0x}, {XRING}')
    I(f's_mul_i32 s{s_wa0}, s{s_w}, {16*2688}')
    I(f's_lshl_b32 s{s_t0}, s{s_c}, 7')
    I(f's_add_u32 s{s_wa0}, s{s_wa0}, s{s_t0}')
    E.wait(lgkm='all')
    def srd(d, p, nbytes):
        I(f's_mov_b32 s{d}, s{p}')
        I(f's_and_b32 s{d+1}, s{p+1}, 0xffff')
        I(f's_mov_b32 s{d+2}, {nbytes}')
        I(f's_mov_b32 s{d+3}, 0x00020000')
    srd(sX, kp+0, 0 if P.get('exp', 0) & 1 else 2048*896)
    def adv(k):
        I(f's_add_u32 s{k}, s{k}, 1')
        I(f's_cmp_eq_u32 s{k}, 7')
        I(f's_cselect_b32 s{k}, 0, s{k}')
    def x_pieces(n):
        def mk(q):
            def f():
                I(f's_add_u32 m0, s{s_m0x}, {(n % 3) * 16384}')
                if q == 0:
                    I(f's_lshl_b32 s{s_u0}, s{s_kx}, 7')
                    I(f's_add_u32 s{s_u0}, s{s_u0}, s{s_xb}')
                I(f'buffer_load_dwordx4 v{vXo+q}, {sr(sX,4)}, s{s_u0} offen offset:{q*1024} lds', tag=f'c{n}')
                if q == 3: adv(s_kx)
            return f
        def g(q):
            def f():
                I(f'buffer_load_dwordx4 v{vXo+q}, {sr(sX,4)}, s{s_u0} offen offset:{q*1024} lds', tag=f'c{n}')
                if q == 3: adv(s_kx)
            return f
        r = [mk(0), g(1), g(2), g(3)]
        for f in r: f.ch = n
        return r
    def w_part(n, part, srdw, vo, rs, base, advance):
        def f0():
            I(f's_add_u32 m0, s{s_m0w}, {(n % 4) * 16384 + part * 8192}')
            I(f's_mul_i32 s{s_u1}, s{s_kw}, {rs}')
            I(f's_add_u32 s{s_u1}, s{s_u1}, s{base}')
            I(f'buffer_load_dwordx4 v{vo}, {sr(srdw,4)}, s{s_u1} offen lds', tag=f'c{n}')
        def f1():
            I(f'buffer_load_dwordx4 v{vo+1}, {sr(srdw,4)}, s{s_u1} offen offset:1024 lds', tag=f'c{n}')
            if advance: adv(s_kw)
        f0.ch = n; f1.ch = n
        return [f0, f1]
    def w_pieces(n, qq=None):
        if n < 7: return w_part(n, 0, sWQ, vWq, 64*2688, s_wa0, True)
        m = (n - 7) % 4
        a = (sA1, vWa1, f's{s_rsA1}', s_wa1) if n < 11 else (sW1, vW1, 64*3584, s_wb)
        r = w_part(n, 0, *a, True)
        if m < 3: r += w_part(n, 1, *a, True)
        return r
    if stamps:
        I(f'v_mov_b32 v{vStamp}, 0')
        I(f'v_writelane_b32 v{vStamp}, s{sTM}, 15')
    stamp(17)
    for f in x_pieces(0): f()
    srd(sWQ, kp+2, 0 if P.get('exp', 0) & 2 else 448*2688)
    for f in w_pieces(0): f()
    srd(sWS, kp+18, WS_SIZE)
    srd(sW1, kp+8, 448*3584)
    srd(sWO, kp+4, 448*896)
    srd(sW2, kp+10, 1792*896)
    srd(sOUT, kp+14, 2048*896)
    I(f's_mov_b64 {sr(sGP,2)}, {sr(kp+12,2)}')
    vTag = V.get()
    I(f'v_mov_b32 v{vT0}, 0')
    I(f'buffer_load_dword v{vTag}, v{vT0}, {sr(sWS,4)}, 0 offen sc1', tag='c1')
    th = []
    stamp(0)
    I(f's_cmp_eq_u32 s{s_ns}, 7')
    I(f's_cselect_b32 s{sW2+2}, 0, s{sW2+2}')
    pq = x_pieces(1) + w_pieces(1) + x_pieces(2) + w_pieces(2) + w_pieces(3)
    def PQ(n=1):
        for _ in range(n):
            if len(pq) > P['pq_keep']: pq.pop(0)()
    S.put(kp, 20)
    s_wc, s_ws, s_we, s_hc, s_hs, s_he, s_f1, s_f2, s_w3a, s_w3b, s_hb0 = [S.get() for _ in range(11)]
    sNeedQ, sNeedV, sNeedE, sNeedL, sNeedO = [S.get(2, 2) for _ in range(5)]

    I(f'v_lshrrev_b32 v{vHi}, 5, v{vLane}')
    I(f'v_and_b32 v{vL31}, 31, v{vLane}')
    vXr = V.get(4); vWt = V.get(2); vWc = V.get(); vQs = V.get(); vFa = V.get()
    vR, vNC, vL16 = V.get(), V.get(), V.get()
    I(f'v_bfe_u32 v{vT0}, v{vLane}, 1, 3')
    I(f'v_xor_b32 v{vT0}, v{vT0}, v{vHi}')
    I(f'v_lshlrev_b32 v{vT2}, 7, v{vL31}')
    I(f'v_add_u32 v{vT2}, s{s_m0x}, v{vT2}')
    for sg in range(4):
        I(f'v_xor_b32 v{vT3}, {2*sg}, v{vT0}')
        I(f'v_lshl_add_u32 v{vXr+sg}, v{vT3}, 4, v{vT2}')
    I(f'v_bfe_u32 v{vR}, v{vLane}, 2, 2')
    I(f'v_bfe_u32 v{vT0}, v{vLane}, 4, 1')
    I(f'v_lshlrev_b32 v{vNC}, 5, v{vT0}')
    I(f'v_and_b32 v{vT0}, 3, v{vLane}')
    I(f'v_lshl_add_u32 v{vNC}, v{vT0}, 3, v{vNC}')
    I(f'v_lshrrev_b32 v{vT0}, 1, v{vR}')
    I(f'v_lshl_add_u32 v{vT1}, v{vT0}, 6, v{vNC}')
    I(f'v_lshl_add_u32 v{vT1}, v{vR}, 7, v{vT1}')
    I(f'v_lshl_add_u32 v{vWt}, v{vHi}, 10, v{vT1}')
    I(f'v_xor_b32 v{vWt+1}, 64, v{vWt}')
    I(f's_and_b32 s{s_t0}, s{s_c}, 8')
    I(f's_lshl_b32 s{s_t0}, s{s_t0}, 3')
    I(f'v_xor_b32 v{vWc}, s{s_t0}, v{vWt}')
    PQ(2)
    vW3tA = V.get(2); vW3tB = V.get(2); vW3o = V.get(5)
    I(f's_lshl_b32 s{s_w3a}, s{s_w}, 14')
    I(f's_mul_i32 s{s_w3b}, s{s_w}, 12288')
    I(f's_add_u32 s{s_w3b}, s{s_w3b}, {R2}')
    I(f'v_lshl_add_u32 v{vT1}, v{vHi}, 9, v{vT1}')
    I(f's_lshr_b32 s{s_t0}, s{s_w}, 1')
    I(f's_lshl_b32 s{s_t0}, s{s_t0}, 6')
    I(f'v_xor_b32 v{vT1}, s{s_t0}, v{vT1}')
    I(f'v_add_u32 v{vW3tA}, s{s_w3a}, v{vT1}')
    I(f'v_add_u32 v{vW3tB}, s{s_w3b}, v{vT1}')
    I(f'v_xor_b32 v{vW3tA+1}, 64, v{vW3tA}')
    I(f'v_xor_b32 v{vW3tB+1}, 64, v{vW3tB}')
    I(f'v_mul_u32_u24 v{vT2}, 3584, v{vL8}')
    I(f'v_add_u32 v{vW1}, v{vT2}, v{vWl}')
    I(f'v_add_u32 v{vW1+1}, {8*3584-1024}, v{vW1}')
    I(f'v_mul_u32_u24 v{vT2}, 896, v{vL8}')
    I(f'v_add_u32 v{vW3o}, v{vT2}, v{vWl}')
    for q in range(1, 4): I(f'v_add_u32 v{vW3o+q}, {q*(7168-1024)}, v{vW3o}')
    vOOB = V.get()
    I(f'v_mov_b32 v{vOOB}, {OOB}')
    I(f'v_cmp_eq_u32 vcc, 0, v{vHi}')
    I(f'v_lshlrev_b32 v{vL16}, 4, v{vLane}')
    I(f'v_cndmask_b32 v{vW3o+4}, v{vOOB}, v{vW3o+3}, vcc')
    vQpad = V.get()
    I(f'v_mov_b32 v{vT0}, 0xf149')
    I(f'v_cndmask_b32 v{vQpad}, v{vT0}, 0, vcc')
    V.put(vWl); V.put(vL8)
    PQ(3)
    I(f's_add_u32 s{s_t1}, s{s_c}, 11')
    unit_of(s_bu, s_t1)
    I(f's_lshr_b32 s{s_t3}, s{s_c}, 3')
    I(f's_mul_i32 s{s_t2}, s{s_t3}, 3')
    I(f's_sub_u32 s{s_t1}, s{s_c}, s{s_t2}')
    I(f's_sub_u32 s{s_t1}, s{s_t1}, 3')
    I(f's_add_u32 s{s_wb}, s{s_t3}, 9')
    I(f's_cmp_eq_u32 s{s_ns}, 7')
    I(f's_cselect_b32 s{s_t1}, s{s_wb}, s{s_t1}')
    unit_of(s_a1, s_t1)
    I(f's_add_u32 s{s_t2}, s{s_t2}, s{s_ns}')
    I(f's_add_u32 s{s_t2}, s{s_t2}, 16')
    I(f's_add_u32 s{s_qq}, s{s_ns}, s{s_t3}')
    I(f's_cmp_lt_u32 s{s_qq}, 3')
    I(f's_cselect_b32 s{s_a1}, s{s_t2}, s{s_a1}')
    for q in range(3): I(f's_cselect_b32 s{sA1+q}, s{sWQ+q}, s{sW1+q}')
    I(f's_mov_b32 s{sA1+3}, 0x00020000')
    I(f's_cselect_b64 vcc, -1, 0')
    I(f's_mov_b32 s{s_t2}, {16*3584}')
    I(f's_cselect_b32 s{s_rsA1}, {16*2688}, s{s_t2}')
    vWa1 = V.get(2)
    for q in range(2): I(f'v_cndmask_b32 v{vWa1+q}, v{vW1+q}, v{vWq+q}, vcc')
    I(f's_mul_i32 s{s_wa1}, s{s_w}, s{s_rsA1}')
    I(f's_lshl_b32 s{s_t0}, s{s_a1}, 7')
    I(f's_add_u32 s{s_wa1}, s{s_wa1}, s{s_t0}')
    I(f's_lshl_b32 s{s_rsA1}, s{s_rsA1}, 2')
    I(f'v_mul_u32_u24 v{vQs}, 21504, v{vHi}')
    I(f'v_lshl_add_u32 v{vQs}, v{vL31}, 4, v{vQs}')
    I(f's_add_u32 s{s_t0}, s{s_a1}, 32')
    I(f's_cmp_lt_u32 s{s_qq}, 3')
    I(f's_cselect_b32 s{s_t0}, s{s_a1}, s{s_t0}')
    I(f's_sub_u32 s{s_t0}, s{s_t0}, s{s_c}')
    I(f'v_mul_u32_u24 v{vT0}, s{s_t0}, v{vLane}')
    I(f's_lshl_b32 s{s_t1}, s{s_T}, 6')
    I(f's_add_u32 s{s_t1}, s{s_t1}, s{s_c}')
    I(f'v_add_u32 v{vT0}, s{s_t1}, v{vT0}')
    I(f'v_lshlrev_b32 v{vFa}, 2, v{vT0}')
    PQ(3)
    vKo = V.get(2); vVo = V.get(2); vKt = V.get(2); vQt = V.get(2); vVt = V.get()
    I(f'v_mul_u32_u24 v{vT2}, 21504, v{vHi}')
    for st in range(2):
        I(f'v_lshlrev_b32 v{vT0}, 2, v{vHi}')
        I(f'v_xor_b32 v{vT0}, v{vT0}, v{vL31}')
        if st: I(f'v_xor_b32 v{vT0}, 8, v{vT0}')
        I(f'v_lshl_add_u32 v{vT3}, v{vT0}, 4, v{vT2}')
        I(f'v_cmp_gt_u32 vcc, 28, v{vT0}')
        if st: I(f'v_add_u32 v{vT3}, {43008-1024}, v{vT3}')
        I(f'v_cndmask_b32 v{vKo+st}, v{vOOB}, v{vT3}, vcc')
    I(f'v_mov_b32 v{vVo}, v{vQs}')
    I(f'v_add_u32 v{vVo+1}, {43008-1024}, v{vQs}')
    I(f'v_bfe_u32 v{vT0}, v{vLane}, 4, 1')
    I(f'v_and_b32 v{vT1}, 1, v{vLane}')
    I(f'v_lshl_add_u32 v{vT2}, v{vT0}, 1, v{vT1}')
    I(f'v_lshlrev_b32 v{vT3}, 9, v{vT2}')
    I(f'v_bfe_u32 v{vT0}, v{vLane}, 1, 1')
    I(f'v_lshl_add_u32 v{vT3}, v{vT0}, 3, v{vT3}')
    I(f'v_lshlrev_b32 v{vT2}, 2, v{vT2}')
    I(f'v_lshl_add_u32 v{vT0}, v{vHi}, 3, v{vR}')
    I(f'v_xor_b32 v{vT0}, v{vT0}, v{vT2}')
    I(f'v_lshl_add_u32 v{vT3}, v{vT0}, 4, v{vT3}')
    I(f's_add_u32 s{s_t0}, s{s_m0w}, {KREG}')
    I(f's_add_u32 s{s_t1}, s{s_w3b}, 8192')
    I(f'v_add_u32 v{vKt}, s{s_t0}, v{vT3}')
    I(f'v_add_u32 v{vQt}, s{s_t1}, v{vT3}')
    I(f'v_xor_b32 v{vKt+1}, 64, v{vKt}')
    I(f'v_xor_b32 v{vQt+1}, 64, v{vQt}')
    I(f'v_add_u32 v{vVt}, s{s_t0}, v{vL16}')
    V.put(vR); V.put(vNC)
    PQ(3)
    vH = V.get(2); vO = V.get(2)
    I(f's_and_b32 s{s_t0}, s{s_w}, 1')
    I(f's_lshl_b32 s{s_hb0}, s{s_mt}, 1')
    I(f's_add_u32 s{s_hb0}, s{s_hb0}, s{s_t0}')
    I(f's_xor_b32 s{s_t1}, s{s_hb0}, 1')
    for b, sb in ((0, s_hb0), (1, s_t1)):
        I(f's_mul_i32 s{s_t2}, s{sb}, {112*1024}')
        I(f's_cmp_eq_u32 s{s_ns}, 7')
        I(f's_cselect_b32 s{s_t2}, {OOB}, s{s_t2}')
        I(f'v_add_u32 v{vH+b}, s{s_t2}, v{vL16}')
        I(f's_lshl_b32 s{s_t2}, s{sb}, 15')
        I(f'v_add_u32 v{vO+b}, s{s_t2}, v{vL16}')
    I(f's_add_u32 s{s_f1}, s{s_mt}, s{s_ns}')
    I(f's_and_b32 s{s_f1}, s{s_f1}, 3')
    I(f's_and_b32 s{s_t0}, s{s_mt}, 3')
    I(f's_mul_i32 s{s_t0}, s{s_t0}, 5')
    I(f's_lshr_b32 s{s_t0}, s{s_t0}, 1')
    I(f's_mul_i32 s{s_t1}, s{s_ns}, 3')
    I(f's_lshr_b32 s{s_t1}, s{s_t1}, 1')
    I(f's_add_u32 s{s_f2}, s{s_t0}, s{s_t1}')
    I(f's_sub_u32 s{s_t0}, s{s_f2}, 10')
    I(f's_cmp_ge_u32 s{s_f2}, 10')
    I(f's_cselect_b32 s{s_f2}, s{s_t0}, s{s_f2}')
    PQ(2)
    I(f's_mul_i32 s{s_ws}, s{s_w}, {448*896}')
    I(f's_lshl_b32 s{s_t0}, s{s_ns}, 7')
    I(f's_add_u32 s{s_ws}, s{s_ws}, s{s_t0}')
    I(f's_add_u32 s{s_we}, s{s_ws}, {4*32*896}')
    I(f's_mul_i32 s{s_wc}, s{s_f1}, {32*896}')
    I(f's_add_u32 s{s_wc}, s{s_wc}, s{s_ws}')
    I(f's_mul_i32 s{s_hs}, s{s_w}, {28*1024}')
    I(f's_add_u32 s{s_hs}, s{s_hs}, {WS_H}')
    I(f's_add_u32 s{s_he}, s{s_hs}, 8192')
    I(f's_lshl_b32 s{s_hc}, s{s_f1}, 11')
    I(f's_add_u32 s{s_hc}, s{s_hc}, s{s_hs}')
    PQ(2)
    vPq, vPh, vPo, vPl0, vPl1 = [V.get() for _ in range(5)]
    I(f'v_lshrrev_b32 v{vT0}, 4, v{vLane}')
    I(f'v_and_b32 v{vT1}, 15, v{vLane}')
    I(f's_mul_i32 s{s_t0}, s{s_w}, 3')
    I(f's_lshl_b32 s{s_t1}, s{s_i}, 2')
    I(f's_add_u32 s{s_t0}, s{s_t0}, s{s_t1}')
    I(f's_sub_u32 s{s_tp}, s{s_t0}, 8')
    I(f'v_add_u32 v{vT2}, s{s_tp}, v{vT0}')
    I(f'v_max_i32 v{vT2}, 0, v{vT2}')
    I(f'v_lshlrev_b32 v{vT2}, 6, v{vT2}')
    I(f'v_add_u32 v{vT2}, 7, v{vT2}')
    I(f's_lshl_b32 s{s_t1}, s{s_T}, 6')
    I(f'v_mov_b32 v{vT3}, s{s_t1}')
    I(f'v_cmp_eq_u32 vcc, 3, v{vT0}')
    I(f'v_cndmask_b32 v{vT2}, v{vT2}, v{vT3}, vcc')
    I(f'v_add_u32 v{vT2}, v{vT2}, v{vT1}')
    I(f'v_lshlrev_b32 v{vPq}, 2, v{vT2}')
    I(f's_lshl_b32 s{s_t0}, s{s_mt}, 1')
    I(f'v_add_u32 v{vT2}, s{s_t0}, v{vT0}')
    I(f'v_lshl_add_u32 v{vPo}, v{vT2}, 4, v{vT1}')
    I(f'v_lshlrev_b32 v{vPo}, 2, v{vPo}')
    I(f'v_lshlrev_b32 v{vT2}, 6, v{vT2}')
    I(f'v_cmp_eq_u32 vcc, 0, v{vHi}')
    I(f's_mul_i32 s{s_t0}, s{s_w}, 7')
    I(f's_add_u32 s{s_t0}, s{s_t0}, 32')
    I(f'v_cndmask_b32 v{vT2}, v{vT3}, v{vT2}, vcc')
    I(f'v_cndmask_b32 v{vPo}, v{vOOB}, v{vPo}, vcc')
    I(f'v_add_u32 v{vT3}, s{s_t0}, v{vT1}')
    I(f'v_cmp_gt_u32 vcc, 8, v{vT1}')
    I(f'v_cndmask_b32 v{vT3}, 21, v{vT3}, vcc')
    I(f'v_add_u32 v{vT2}, v{vT2}, v{vT3}')
    I(f'v_lshlrev_b32 v{vPh}, 2, v{vT2}')
    PQ(2)
    I(f's_mul_i32 s{s_t0}, s{s_c}, 28')
    I(f's_lshr_b32 s{s_t1}, s{s_t0}, 6')
    I(f's_lshl_b32 s{s_t1}, 1, s{s_t1}')
    I(f's_add_u32 s{s_t0}, s{s_t0}, 27')
    I(f's_lshr_b32 s{s_t0}, s{s_t0}, 6')
    I(f's_bitset1_b32 s{s_t1}, s{s_t0}')
    I(f's_mul_i32 s{sNeedQ}, s{s_t1}, 0x10001')
    I(f's_mov_b32 s{sNeedQ+1}, s{sNeedQ}')
    I(f's_lshl_b32 s{sNeedV}, s{sNeedQ}, 7')
    I(f's_lshl_b32 s{sNeedV+1}, s{s_t1}, 7')
    I(f's_cmp_eq_u32 s{s_w}, 3')
    I(f's_mov_b32 s{s_t0}, 0x007c007c')
    I(f's_cselect_b32 s{sNeedL}, 0x00fc00fc, s{s_t0}')
    I(f's_cmp_eq_u32 s{s_ns}, 7')
    I(f's_cselect_b32 s{sNeedL}, 0, s{sNeedL}')
    I(f's_cselect_b32 s{sNeedE}, 0, 0x01030103')
    I(f's_mov_b32 s{sNeedL+1}, 0')
    I(f's_mov_b32 s{sNeedE+1}, 0x100')
    I(f's_lshl_b32 s{s_t0}, s{s_w}, 2')
    I(f's_lshl_b32 s{sNeedO}, 0x000f000f, s{s_t0}')
    I(f's_mov_b32 s{sNeedO+1}, 0')

    PQ(P['pq_last'])
    def flag_store(soff):
        I(f'v_mov_b32 v{vT0}, 0')
        I('s_mov_b64 exec, 1')
        I(f'buffer_store_dword v{vTag}, v{vT0}, {sr(sWS,4)}, s{soff} offen sc1', tag='flagst')
        I('s_mov_b64 exec, -1')
    def flag_T(idx):
        I(f's_lshl_b32 s{s_t0}, s{s_T}, 8')
        if isinstance(idx, int):
            I(f's_add_u32 s{s_t0}, s{s_t0}, {WS_F + 4*idx}')
        else:
            sg_, add = idx
            I(f's_lshl_b32 s{s_t1}, s{sg_}, 2')
            I(f's_add_u32 s{s_t0}, s{s_t0}, s{s_t1}')
            I(f's_add_u32 s{s_t0}, s{s_t0}, {WS_F + 4*add}')
        flag_store(s_t0)

    def poll_issue(dst, vaddr, base, tag):
        I(f's_movk_i32 s{s_cnt}, {base}')
        I(f'buffer_load_dword v{dst}, v{vaddr}, {sr(sWS,4)}, s{s_cnt} offen sc1', tag=tag)
    def poll_check(dst, vaddr, base, tag, need):
        lab = L('poll'); done = L('pollok')
        E.wait(vm=tag)
        I(f'v_cmp_ne_u32 vcc, v{dst}, v{vTag}')
        I(f's_and_b64 {sr(sP,2)}, vcc, {sr(need,2)}')
        I(f's_cbranch_scc0 {done}')
        sn = E.snapshot()
        I(f's_mov_b32 s{s_cnt}, 0')
        I(f's_movk_i32 s{s_t0}, {base}')
        E.label(lab)
        I(f'buffer_load_dword v{dst}, v{vaddr}, {sr(sWS,4)}, s{s_t0} offen sc1')
        I('s_waitcnt vmcnt(0)')
        I(f'v_cmp_ne_u32 vcc, v{dst}, v{vTag}')
        I(f's_add_u32 s{s_cnt}, s{s_cnt}, 1')
        I(f's_and_b64 {sr(sP,2)}, vcc, {sr(need,2)}')
        I(f's_cbranch_scc0 {done}')
        I(f's_cmp_lt_u32 s{s_cnt}, {SPIN_MAX}')
        I(f's_cbranch_scc1 {lab}')
        E.restore(sn)
        E.label(done)

    def w3_slot(p):
        sl = p % 7
        if sl < 2: return (s_w3b, vW3tB, sl * 4096)
        if sl == 6: return (s_w3b, vW3tB, 8192)
        return (s_w3a, vW3tA, (sl - 2) * 4096)
    def stream_adv(cur, st, en, step, p, nxt):
        if p in (3, 13): nxt(p)
        elif p < 17:
            I(f's_add_u32 s{cur}, s{cur}, {step}')
            I(f's_cmp_eq_u32 s{cur}, s{en}')
            I(f's_cselect_b32 s{cur}, s{st}, s{cur}')
    def w_next(p):
        if p == 3:
            I(f's_mov_b32 s{s_ws}, s{s_we}')
            I(f's_add_u32 s{s_we}, s{s_ws}, {10*32*896}')
            I(f's_mul_i32 s{s_wc}, s{s_f2}, {32*896}')
        else:
            I(f's_mul_i32 s{s_ws}, s{s_w}, {112*896}')
            I(f's_lshl_b32 s{s_wc}, s{s_ns}, 7')
            I(f's_add_u32 s{s_ws}, s{s_ws}, s{s_wc}')
            I(f's_add_u32 s{s_we}, s{s_ws}, {112*896}')
            I(f's_mul_i32 s{s_wc}, s{s_f1}, {28*896}')
        I(f's_add_u32 s{s_wc}, s{s_wc}, s{s_ws}')
    def h_next(p):
        if p == 3:
            I(f's_mov_b32 s{s_hs}, s{s_he}')
            I(f's_add_u32 s{s_he}, s{s_hs}, 20480')
            I(f's_lshl_b32 s{s_hc}, s{s_f2}, 11')
        else:
            I(f's_lshl_b32 s{s_hs}, s{s_w}, 13')
            I(f's_add_u32 s{s_hs}, s{s_hs}, {WS_O}')
            I(f's_add_u32 s{s_he}, s{s_hs}, 8192')
            I(f's_lshl_b32 s{s_hc}, s{s_f1}, 11')
        I(f's_add_u32 s{s_hc}, s{s_hc}, s{s_hs}')
    def w3_pieces(p):
        sb, _, off = w3_slot(p)
        sd = sW2 if p < 14 else sWO
        def mk(q):
            def f():
                if q == 0: I(f's_add_u32 m0, s{sb}, {off}')
                vo = vW3o + (4 if (q == 3 and p >= 14) else q)
                I(f'buffer_load_dwordx4 v{vo}, {sr(sd,4)}, s{s_wc} offen offset:{q*1024} lds', tag=f'w3_{2*p+q//2}')
                if q == 3: stream_adv(s_wc, s_ws, s_we, (32 if p < 14 else 28) * 896, p, w_next)
            return f
        return [mk(q) for q in range(4)]
    def areg(k, b):
        return ar(8*(k % 28) + 4*b, 4)
    def h_pieces(p):
        vo = vH if p < 14 else vO
        def mk(q):
            def f():
                s_, b = q >> 1, q & 1
                I(f'buffer_load_dwordx4 {areg(2*p+s_, b)}, v{vo+b}, {sr(sWS,4)}, s{s_hc} offen offset:{s_*1024} sc1', tag=f'h{2*p+s_}')
                if q == 3: stream_adv(s_hc, s_hs, s_he, 2048, p, h_next)
            return f
        return [mk(q) for q in range(4)]

    acc = V.get(64, 4); accB = V.get(32, 4); wf = V.get(64, 4); pk = V.get(32, 4)
    def trd(g, idx, va, off):
        return (f'ds_read_b64_tr_b16 {vr(wf+16*(g%4)+2*idx,2)}, v{va} offset:{off}')
    def grpA2(g):
        n = g >> 1; rd = []; mf = []
        for u in range(2):
            ss = 2*g + u; sg = ss & 3
            rd.append(f'ds_read_b128 {ar(4*ss,4)}, v{vXr+sg} offset:{(n%3)*16384}')
            for t in range(2):
                for h in range(2):
                    rd.append(trd(g, 4*u+2*t+h, vWt + t, (n%4)*16384 + sg*2048 + h*512))
                d = vr(acc+16*t, 16)
                mf.append(f'{MF} {d}, {ar(4*ss,4)}, {vr(wf+16*(g%4)+8*u+4*t,4)}, {"0" if ss == 0 else d}')
        return dict(rd=rd, mf=mf, ch=n, fast=True)
    def grpB(g, j, ch0, ac, qt=False):
        n = ch0 + (j >> 2); rd = []; mf = []
        for u in range(2):
            ss = 2*j + u; m, sg = ss >> 2, ss & 3
            for t in range(2):
                for h in range(2):
                    rd.append(trd(g, 4*u+2*t+h, vWt + t, (n%4)*16384 + (m&1)*8192 + sg*2048 + h*512))
                d = vr(ac+16*t, 16)
                a_, b_ = vr(wf+16*(g%4)+8*u+4*t,4), ar(4*ss,4)
                if qt: a_, b_ = b_, a_
                mf.append(f'{MF} {d}, {a_}, {b_}, {"0" if ss == 0 else d}')
        return dict(rd=rd, mf=mf, ch=n)
    def grpC(g, m, ch0, ac):
        n = ch0 + (m >> 1); rd = []; mf = []
        for sg in range(4):
            for h in range(2):
                rd.append(trd(g, 2*sg+h, vWc, (n%4)*16384 + (m&1)*8192 + sg*2048 + h*512))
            d = vr(ac, 16)
            mf.append(f'{MF} {d}, {vr(wf+16*(g%4)+4*sg,4)}, {ar(16*m+4*sg,4)}, {"0" if m == 0 and sg == 0 else d}')
        return dict(rd=rd, mf=mf, ch=n)
    def grpG(g, m, ac):
        d = vr(ac, 16)
        rd = [f'ds_read_b128 {vr(wf+16*(g%4)+4*sg,4)}, v{vGa} offset:{m*128+sg*32}' for sg in range(4)]
        return dict(rd=rd, ch=6, mf=[f'{MF} {d}, {vr(wf+16*(g%4)+4*sg,4)}, {ar(16*m+4*sg,4)}, {"0" if m == 0 and sg == 0 else d}' for sg in range(4)])

    vq = []
    eq = []
    def run_groups(G, g0, g1, lastch, hooks, qq, reb={}):
        for g in range(g0, g1):
            for hg, hf in hooks:
                if hg == g: hf()
            cur = G[g]
            nxt = G[g+2] if g + 2 < len(G) else None
            rd = list(nxt['rd']) if nxt else []
            bound = nxt is not None and nxt['ch'] != G[g+1]['ch']
            E.wait(lgkm=f'r{g}', vm=cur.get('vm'))
            per = [3, 3, 2, 2] if not bound else [0, 4, 3, 3]
            for m in range(4):
                I(cur['mf'][m])
                if bound and m == 1:
                    n1 = nxt['ch']
                    if P.get('fine'): stamp(22 + 2*n1)
                    while any(getattr(f, 'ch', None) == n1 for f in vq): vq.pop(0)()
                    E.wait(vm=f'c{n1}', lgkm='all')
                    I('s_barrier')
                    if P.get('fine'): stamp(23 + 2*n1)
                    if n1 + 2 < 7: vq.extend(x_pieces(n1 + 2))
                    if n1 + 3 in reb: vq.append(lambda u=reb[n1+3]: (rebase_u(u), vq.pop(0)()))
                    if n1 + 3 <= lastch: vq.extend(w_pieces(n1 + 3, qq))
                for _ in range(per[m]):
                    if rd: I(rd.pop(0), tag=f'r{g+2}')
                if vq and ((m & 1) or cur.get('fast') or len(vq) > 8): vq.pop(0)()
                for _ in range(P['epi_rate']):
                    if eq: eq.pop(0)()
            assert not rd

    def q_u(s): return lambda: I(s)
    def epi_q(ac, u_sgpr, pkb, tag):
        def base():
            I(f's_mul_i32 s{s_t2}, s{s_T}, 86016')
            I(f's_lshl_b32 s{s_t3}, s{u_sgpr}, 10')
            I(f's_add_u32 s{s_t2}, s{s_t2}, s{s_t3}')
            I(f's_add_u32 s{s_t2}, s{s_t2}, {WS_QKV}')
            I(f's_add_u32 s{s_t3}, s{s_t2}, 43008')
        r = [base]
        for t in range(2):
            for st in range(2):
                d = pkb + 8*t + 4*st
                for k in range(4):
                    s0 = ac + 16*t + 8*st + 2*k
                    r.append(q_u(f'v_cvt_pk_bf16_f32 v{d+k}, v{s0}, v{s0+1}'))
                r.append(lambda d=d, st=st, t=t: I(f'buffer_store_dwordx4 {vr(d,4)}, v{vQs}, {sr(sWS,4)}, s{s_t3 if st else s_t2} offen offset:{t*512} sc1', tag=tag))
        return r
    def epi_h(ac, u_sgpr, pkb, tag, nt=2, half=False):
        def base():
            I(f's_mul_i32 s{s_t2}, s{s_T}, {112*1024}')
            if half:
                I(f's_and_b32 s{s_t3}, s{s_c}, 8')
                I(f's_lshl_b32 s{s_t3}, s{s_t3}, 8')
                I(f's_add_u32 s{s_t3}, s{s_t3}, {27*4096}')
            else:
                I(f's_lshl_b32 s{s_t3}, s{u_sgpr}, 12')
            I(f's_add_u32 s{s_t2}, s{s_t2}, s{s_t3}')
            I(f's_add_u32 s{s_t2}, s{s_t2}, {WS_H}')
        r = [base]
        for f in range(2*nt):
            d = pkb + 4*f
            for k in range(4):
                s0 = ac + 8*f + 2*k
                r.append(q_u(f'v_cvt_pk_bf16_f32 v{d+k}, v{s0}, v{s0+1}'))
            for k in range(4):
                r.append(q_u(f'v_pk_max_i16 v{d+k}, v{d+k}, 0'))
            r.append(lambda d=d, f=f: I(f'buffer_store_dwordx4 {vr(d,4)}, v{vL16}, {sr(sWS,4)}, s{s_t2} offen offset:{f*1024} sc1', tag=tag))
        return r
    cscale = hex(f32bits(math.log2(math.e) / math.sqrt(28.0)))
    def scale_q(cond):
        lab = L('nosc')
        if cond:
            I(f's_cmp_ge_u32 s{s_c}, 7')
            I(f's_cbranch_scc1 {lab}')
        I(f's_mov_b32 s{s_t0}, {cscale}')
        for r in range(32): I(f'v_mul_f32 v{acc+r}, s{s_t0}, v{acc+r}')
        if cond:
            E.label(lab)
            E.hist = E.hist_save
    held = []
    def rebase_u(u):
        I(f's_mul_i32 s{s_wb}, s{s_w}, {16*3584}')
        if isinstance(u, str):
            I(f's_lshl_b32 s{s_u1}, {u}, 7'); I(f's_add_u32 s{s_wb}, s{s_wb}, s{s_u1}')
        else: I(f's_add_u32 s{s_wb}, s{s_wb}, {u*128}')
    def hflag(tag, ex, st=None):
        def f():
            E.wait(vm=tag)
            I(f's_movk_i32 s{s_t0}, {WS_F}')
            I(f's_mov_b64 exec, {ex}')
            I(f'buffer_store_dword v{vTag}, v{vFa}, {sr(sWS,4)}, s{s_t0} offen sc1', tag='flagst')
            I('s_mov_b64 exec, -1')
            if st: stamp(st)
        return f
    def a_flag():
        assert not eq
        hflag('ast', 1, 2)()
    def mk_tag():
        I(f'v_add_u32 v{vTag}, {hex(TAGINC)}, v{vTag}')
    def start_A(G):
        vq[:] = pq
        E.wait(vm='c0')
        stamp(16)
        I('s_barrier')
        for g in (0, 1):
            for r in G[g]['rd']: I(r, tag=f'r{g}')
    def epiA(cond):
        def f():
            stamp(1)
            if cond:
                def sc():
                    E.hist_save = list(E.hist)
                    scale_q(True)
                eq.append(sc)
            eq.extend(epi_q(acc, s_c, pk, 'ast'))
        return f
    def epi_held(ac, u, pkb, tag):
        def f():
            r = epi_h(ac, u, pkb, tag)
            st = [r[0]] + [r[9*f+9] for f in range(4)]
            eq.extend([x for x in r if x not in st]); held.extend(st)
        return f
    def w3_early():
        for p in range(2): vq.extend(w3_pieces(p))
    def q_issue(): poll_issue(vPl0, vPq, WS_F, 'pq')
    def kv_dma(isv):
        I(f's_mul_i32 s{s_t3}, s{s_c}, 448')
        I(f's_add_u32 s{s_t3}, s{s_t3}, {WS_QKV}')
        I(f's_mul_i32 s{s_t2}, s{s_w}, 6144')
        if isv:
            I('s_mov_b32 exec_lo, 0x0fffffff')
            I('s_mov_b32 exec_hi, 0x0fffffff')
        else:
            I(f's_mul_i32 s{s_t1}, s{s_T}, 86016')
            I(f's_add_u32 s{s_t1}, s{s_t1}, s{s_t3}')
            I(f's_add_u32 m0, s{s_w3b}, 8192')
            for st in range(2):
                I(f'buffer_load_dwordx4 v{vKo+st}, {sr(sWS,4)}, s{s_t1} offen offset:{st*1024} sc1 lds', tag='qk')
        for j in range(3):
            I(f's_add_i32 s{s_t0}, s{s_tp}, {j}')
            I(f's_max_i32 s{s_t0}, s{s_t0}, 0')
            I(f's_mul_i32 s{s_t0}, s{s_t0}, 86016')
            I(f's_add_u32 s{s_t0}, s{s_t0}, s{s_t3}')
            I(f's_add_u32 s{s_t1}, s{s_t0}, {7168 * (1 + isv)}')
            I(f's_add_u32 m0, s{s_t2}, {(VREG if isv else KREG) + j*2048}')
            for st in range(2):
                I(f'buffer_load_dwordx4 v{(vVo if isv else vKo)+st}, {sr(sWS,4)}, s{s_t1} offen offset:{st*1024} sc1 lds', tag='v' if isv else 'qk')
        if isv: I('s_mov_b64 exec, -1')
    def kq():
        while vq: vq.pop(0)()
        while eq: eq.pop(0)()
        stamp(4)
        poll_check(vPl0, vPq, WS_F, 'pq', sNeedQ)
        stamp(5)
        kv_dma(0)
        while held: held.pop(0)()
    one4 = V.get(4, 4)
    def finish(ac):
        assert not eq and not held
        while vq: vq.pop(0)()
        stamp(3)
        epi_held(ac, s_bu, pk, 'bst')()
        while eq: eq.pop(0)()
        held.clear()
        for k in range(4): I(f'v_mov_b32 v{one4+k}, 0x3f803f80')
        E.wait(vm='qk', lgkm='all')

    GA = [grpA2(g) for g in range(14)]
    GL = GA + [grpB(14+j, j, 7, accB) for j in range(14)] + [grpB(28+j, j, 11, acc+32) for j in range(14)]
    GQ = GA + [grpB(14+j, j, 7, accB, True) for j in range(14)] + GL[28:]
    start_A(GL)
    run_groups(GL, 0, 10, 14, [(8, mk_tag)], False)
    I(f's_cmp_eq_u32 s{s_ns}, 7')
    I('s_cbranch_scc1 L_heavy')
    snap1 = E.snapshot(); vq1 = list(vq)
    run_groups(GL, 10, 14, 14, [], False)
    I(f's_cmp_lt_u32 s{s_qq}, 3')
    I('s_cbranch_scc1 L_qq')
    snap0 = E.snapshot(); vq0 = list(vq)
    run_groups(GL, 14, 42, 14, [(14, epiA(True)), (P['aflag_g'], a_flag), (28, epi_held(accB, s_a1, pk+16, 'hst')),
                                (P['w3_g'], w3_early), (P['pq_g'], q_issue), (P['pc_g'], kq)], False, {11: f's{s_bu}'})
    if P['pc_g'] >= 42: kq()
    finish(acc+32)
    I('s_branch L_p2')
    E.label('L_heavy')
    E.restore(snap1); vq[:] = vq1
    accG = acc + 48; vGa = vXo
    GH = (GA + [grpG(14+m, m, accG) for m in range(7)] + [grpB(21+j, j, 7, accB) for j in range(14)]
          + [grpC(35+m, m, 11, acc+32) for m in range(7)] + [grpB(42+j, j, 15, acc) for j in range(14)])
    def gate_dma():
        while vq: vq.pop(0)()
        srd(sX, sGP, 896)
        I('s_mov_b32 exec_hi, 0x00ffffff')
        I(f's_mov_b32 m0, s{s_w3b}')
        I(f'buffer_load_dwordx4 v{vL16}, {sr(sX,4)}, 0 offen lds', tag='gf')
        I(f's_add_u32 m0, s{s_w3b}, 896')
        I(f'buffer_load_dwordx4 v{vL16}, {sr(sX,4)}, 0 offen lds', tag='gf')
        I('s_mov_b64 exec, -1')
    def gate_addr():
        E.wait(vm='gf')
        I(f's_lshl_b32 s{s_t0}, s{s_rho}, 7')
        I(f's_add_u32 s{s_t0}, s{s_t0}, s{s_w3b}')
        I(f'v_lshl_add_u32 v{vGa}, v{vHi}, 4, s{s_t0}')
    def epiG():
        def g():
            I(f'v_cvt_pk_bf16_f32 v{vT0}, v{accG}, v{accG}')
            I(f'v_and_b32 v{vT0}, 0xffff0000, v{vT0}')
            I(f'v_mul_f32 v{vT0}, {hex(f32bits(-math.log2(math.e)))}, v{vT0}')
            I(f'v_exp_f32 v{vT0}, v{vT0}')
            I(f'v_add_f32 v{vT0}, 1.0, v{vT0}')
            I(f'v_rcp_f32 v{vT0}, v{vT0}')
            I(f'v_cvt_pk_bf16_f32 v{vT0}, v{vT0}, v{vT0}')
            I(f'v_and_b32 v{vT2}, 0xffff0000, v{vT0}')
            I(f'v_sub_f32 v{vT0}, 1.0, v{vT2}')
            I(f'v_cvt_pk_bf16_f32 v{vT0}, v{vT0}, v{vT0}')
            I(f'v_and_b32 v{vT3}, 0xffff0000, v{vT0}')
            I(f'v_cmp_eq_u32 vcc, 0, v{vHi}')
            I(f'v_lshlrev_b32 v{vT0}, 13, v{vHi}')
            I(f'v_lshl_add_u32 v{vT0}, v{vL31}, 2, v{vT0}')
            I(f'v_cndmask_b32 v{vT2}, v{vT3}, v{vT2}, vcc')
            I(f's_lshl_b32 s{s_t2}, s{s_T}, 7')
            I(f's_add_u32 s{s_t2}, s{s_t2}, {WS_G}')
            I(f'buffer_store_dword v{vT2}, v{vT0}, {sr(sWS,4)}, s{s_t2} offen sc1', tag='gst')
        eq.append(g)
    def g_flag():
        E.wait(vm='gst'); flag_T(21)
    def b1_flag():
        E.wait(vm='hst'); flag_T((s_a1, 32))
    def c_flag():
        E.wait(vm='cst')
        I(f's_lshr_b32 s{s_t2}, s{s_c}, 3')
        flag_T((s_t2, 59))
    ag = P['aflag_g']
    run_groups(GH, 10, 56, 18, [(10, gate_dma), (12, gate_addr), (14, epiA(False)), (ag, a_flag), (max(22, ag), epiG), (33, g_flag),
                                (35, lambda: eq.extend(epi_h(accB, s_a1, pk+16, 'hst'))),
                                (42, lambda: eq.extend(epi_h(acc+32, None, pk, 'cst', nt=1, half=True))),
                                (47, b1_flag), (52, c_flag), (52, q_issue)], False, {11: 27, 15: f's{s_bu}'})
    kq()
    finish(acc)
    I('s_branch L_p2')
    E.label('L_qq')
    E.restore(snap0); vq[:] = vq0
    run_groups(GQ, 14, 42, 14, [(14, epiA(True)), (P['aflag_g'], a_flag), (28, lambda: eq.extend(epi_q(accB, s_a1, pk+16, 'hst'))),
                                (P['w3_g'], w3_early), (P['pq_g'], q_issue), (P['pc_g'], hflag('hst', 2, 19)), (P['pc_g'], kq)], False, {11: f's{s_bu}'})
    finish(acc+32)

    E.label('L_p2')
    E.collapse('pre')
    poll_issue(vPl0, vPq, WS_F, 'pv')
    V.put(acc, 64); V.put(accB, 32); V.put(wf, 64); V.put(pk+16, 16)
    for r_, n_ in ((vXo, 4), (vWq, 2), (vW1, 2), (vWa1, 2), (vXr, 4), (vWt, 2), (vWc, 1), (vQs, 1)): V.put(r_, n_)
    I(f'v_lshrrev_b32 v{vT0}, 2, v{vLane}')
    I(f'v_lshlrev_b32 v{vT1}, 9, v{vT0}')
    I(f'v_and_b32 v{vT2}, 3, v{vLane}')
    I(f'v_lshl_add_u32 v{vT1}, v{vT2}, 4, v{vT1}')
    I(f's_mul_i32 s{s_t2}, s{s_w}, 6144')
    I(f's_add_u32 s{s_t0}, s{s_t2}, {VREG + 448}')
    I(f'v_add_u32 v{vT1}, s{s_t0}, v{vT1}')
    I('s_mov_b32 exec_hi, 0xffff')
    I(f'ds_write_b128 v{vT1}, {vr(one4,4)}', tag='ones')
    I('s_mov_b64 exec, -1')
    I(f's_cmp_ge_i32 s{s_tp}, 0')
    I('s_cbranch_scc1 L_valid')
    sn = E.snapshot()
    I(f'v_lshlrev_b32 v{vT2}, 2, v{vT2}')
    I(f'v_xor_b32 v{vT2}, 28, v{vT2}')
    I(f'v_lshlrev_b32 v{vT2}, 4, v{vT2}')
    I(f'v_lshl_add_u32 v{vT2}, v{vLane}, 9, v{vT2}')
    I(f's_add_u32 s{s_t0}, s{s_t2}, {KREG}')
    I(f'v_add_u32 v{vT2}, s{s_t0}, v{vT2}')
    I(f'v_add_u32 v{vT0}, s{s_tp}, v{vT0}')
    I(f'v_cmp_gt_i32 vcc, 0, v{vT0}')
    I(f's_and_b64 exec, vcc, 0xfff')
    I(f'ds_write_b128 v{vT2}, {vr(one4,4)}')
    I('s_mov_b64 exec, -1')
    E.restore(sn)
    E.label('L_valid')
    I(f's_lshl_b32 s{s_t0}, s{s_T}, 6')
    I(f's_add_u32 s{s_t0}, s{s_t0}, s{s_bu}')
    I(f's_add_u32 s{s_t0}, s{s_t0}, 32')
    I(f's_lshl_b32 s{s_t0}, s{s_t0}, 2')
    I(f'v_writelane_b32 v{vFa}, s{s_t0}, 0')
    I('s_waitcnt lgkmcnt(0)'); E.lgkm = []
    I('s_barrier')
    stamp(6)
    for s_ in p1s:
        if s_ != s_bu: S.put(s_)
    for s_ in (sX, sWQ, sW1, sA1): S.put(s_, 4)
    S.put(sGP, 2)
    sMASK = [S.get(2, 2) for _ in range(16)]
    vBM = V.get(8)
    KF = V.get(72, 4); Sx = V.get(48, 4); Mx = V.get(16, 4); NM = V.get(16, 4); O = pk; qf = V.get(8, 4)
    vM, vM2, vG = V.get(), V.get(), V.get()
    vOm = V.get(2)
    VF = 224
    t0 = E.t
    last = [E.t]
    events = []
    def tick():
        while events and E.t - t0 >= events[0][0]: events.pop(0)[1]()
        if vq and E.t - last[0] >= P['vpace']:
            last[0] = E.t; vq.pop(0)()
    def J(s, tag=None):
        I(s, tag); tick()
    def e_issue(): poll_issue(vPl1, vPh, WS_F, 'pe')
    def e_check():
        poll_check(vPl1, vPh, WS_F, 'pe', sNeedE)
        stamp(9)
        I(f'v_lshlrev_b32 v{vT0}, 2, v{vL31}')
        I(f's_lshl_b32 s{s_t0}, s{s_T}, 7')
        I(f's_add_u32 s{s_t0}, s{s_t0}, {WS_G}')
        I(f'buffer_load_dword v{vG}, v{vT0}, {sr(sWS,4)}, s{s_t0} offen sc1', tag='g')
        I(f's_lshl_b32 s{s_t0}, s{s_hb0}, 7')
        I(f's_add_u32 s{s_t0}, s{s_t0}, {WS_G + 0x2000}')
        I(f'buffer_load_dword v{vOm}, v{vT0}, {sr(sWS,4)}, s{s_t0} offen sc1', tag='g')
        I(f's_xor_b32 s{s_t0}, s{s_t0}, 128')
        I(f'buffer_load_dword v{vOm+1}, v{vT0}, {sr(sWS,4)}, s{s_t0} offen sc1', tag='g')
        for p in range(0, 4): vq.extend(h_pieces(p))
    def late_issue(): poll_issue(vPl1, vPh, WS_F, 'pl')
    def v_check():
        hflag('pre', 2)()
        poll_check(vPl0, vPq, WS_F, 'pv', sNeedV)
        stamp(20)
        kv_dma(1)
        epi_held(0, s_bu, pk, 'bst')(); eq.clear()
        while held: held.pop(0)()
        for p in range(2, 7): vq.extend(w3_pieces(p))
    events += sorted([(P['vchk_t'], v_check), (P['f2_t'], hflag('bst', 1, 14)), (P['epoll_t'], e_issue), (P['echk_t'], e_check)], key=lambda x: x[0])
    def masks():
        I(f'v_lshlrev_b32 v{vT0}, 2, v{vHi}')
        I(f'v_sub_u32 v{vT0}, v{vL31}, v{vT0}')
        for r in range(16):
            I(f'v_cmp_le_i32 {sr(sMASK[r],2)}, {8*(r>>2)+(r&3)}, v{vT0}')
    def bmasks():
        r = [f'v_mov_b32 v{vT2}, 0xffff', f'v_mov_b32 v{vT3}, 0xffff0000']
        for k in range(8):
            r += [f'v_cndmask_b32 v{vBM+k}, 0, v{vT2}, {sr(sMASK[2*k],2)}', f'v_cndmask_b32 v{vT1}, 0, v{vT3}, {sr(sMASK[2*k+1],2)}',
                  f'v_or_b32 v{vBM+k}, v{vBM+k}, v{vT1}']
        return r
    def kread(dst, va, off, tag):
        for dl in range(2):
            for rho in range(2):
                J(f'ds_read_b64_tr_b16 {vr(dst+4*dl+2*rho,2)}, v{va+rho} offset:{off+dl*256}', tag=tag)
    order = [0, 8, 1, 2, 3, 4, 5, 6, 7]
    kread(qf, vQt, 0, 'q')
    for j in order[:2]: kread(KF+8*j, vKt, j*2048, f'k{j}')
    masks()
    E.wait(lgkm='q')
    I(f'v_or_b32 v{qf+6}, v{qf+6}, v{vQpad}')
    def sdst(idx):
        return Mx if idx == 1 else Sx + 16 * ([0, None, 1, 2, 0, 1, 2, 0, 1][idx])
    firstmax = [True]
    def maxops(b):
        r = []
        for k in range(0, 16, 4):
            if firstmax[0]:
                r += [f'v_max_f32 v{vM}, v{b}, v{b+1}', f'v_max_f32 v{vM2}, v{b+2}, v{b+3}']; firstmax[0] = False
            else:
                r += [f'v_max3_f32 v{vM}, v{b+k}, v{b+k+1}, v{vM}', f'v_max3_f32 v{vM2}, v{b+k+2}, v{b+k+3}, v{vM2}']
        return r
    fq = []
    for idx, j in enumerate(order):
        d = vr(sdst(idx), 16)
        if idx == 1: fq += bmasks()[:14]
        if idx == 2: fq += bmasks()[14:]
        if idx == 3:
            fq += [f'v_cndmask_b32 v{Mx+r}, v{Sx+r}, v{Mx+r}, {sr(sMASK[r],2)}' for r in range(16)]
        if idx == 4:
            while fq: J(fq.pop(0))
            fq += maxops(Mx)
        if idx >= 4: fq += maxops(sdst(idx - 2))
        if idx >= 5:
            pass
        E.wait(lgkm=f'k{j}')
        for dl in range(2):
            J(f'{MF} {d}, {vr(KF+8*j+4*dl,4)}, {vr(qf+4*dl,4)}, {"0" if dl == 0 else d}')
            if idx + 2 < 9:
                jn = order[idx+2]
                for rho in range(2):
                    J(f'ds_read_b64_tr_b16 {vr(KF+8*jn+4*dl+2*rho,2)}, v{vKt+rho} offset:{jn*2048+dl*256}', tag=f'k{jn}')
            n = (len(fq) + 1) // 2 if dl == 0 else len(fq)
            for _ in range(n): J(fq.pop(0))
    assert E.cnt.get('v', 0) == 6
    def vread(j, slot):
        for st in range(2):
            J(f'ds_read_b128 {ar(VF+8*slot+4*st,4)}, v{vVt} offset:{VREG-KREG+j*2048+st*1024}', tag=f'v{j}')
    vslot = {8: 0, 0: 1, 1: 2, 2: 3, 3: 0, 4: 1, 5: 2, 6: 3, 7: 0}
    for s_ in maxops(sdst(7)) + maxops(sdst(8)): J(s_)
    J(f'v_max_f32 v{vM}, v{vM}, v{vM2}')
    J(f'v_mov_b32 v{vM2}, v{vM}')
    J(f'v_permlane32_swap_b32 v{vM}, v{vM2}')
    J(f'v_max_f32 v{vM}, v{vM}, v{vM2}')
    J(f'v_sub_f32 v{NM}, 0, v{vM}')
    J(f'v_sub_f32 v{NM+1}, 0, v{vM}')
    for k in range(2, 16, 2): J(f'v_mov_b64 {vr(NM+k,2)}, {vr(NM,2)}')
    def qk2(j):
        d = vr(Sx + 16*(j % 3), 16)
        return [f'{MF} {d}, {vr(KF+8*j,4)}, {vr(qf,4)}, {vr(NM,16)}', f'{MF} {d}, {vr(KF+8*j+4,4)}, {vr(qf+4,4)}, {d}']
    firstpv = [True]
    def pv(j, preg, st):
        d = vr(O, 16)
        E.wait(lgkm=f'v{j}')
        J(f'{MF} {d}, {ar(VF+8*vslot[j]+4*st,4)}, {vr(preg,4)}, {"0" if firstpv[0] else d}')
        firstpv[0] = False
    mq = qk2(1) + qk2(2)
    J(mq.pop(0))
    pend = []
    for j in [8, 1, 2, 3, 4, 5, 6, 7]:
        b = Mx if j == 8 else Sx + 16*(j % 3)
        if j != 8 and j + 2 <= 7: nq = qk2(j + 2)
        else: nq = []
        for st in range(2):
            bb = b + 8*st
            if j == 8:
                for k in range(8): J(f'v_sub_f32 v{bb+k}, v{bb+k}, v{vM}')
                if mq: J(mq.pop(0))
            for k in range(8):
                J(f'v_exp_f32 v{bb+k}, v{bb+k}')
                if k == 1 and pend: pv(*pend.pop(0))
                if k == 5:
                    if pend: pv(*pend.pop(0))
                    elif mq: J(mq.pop(0))
                    elif nq: J(nq.pop(0))
            if j == 8 and st == 0:
                E.wait(vm='v')
                I('s_barrier')
                stamp(21)
                for jj in (8, 0, 1, 2): vread(jj, vslot[jj])
            for k in range(4): J(f'v_cvt_pk_bf16_f32 v{bb+k}, v{bb+2*k}, v{bb+2*k+1}')
            if j == 8:
                for k in range(4):
                    J(f'v_bfi_b32 v{bb+4+k}, v{vBM+4*st+k}, 0, v{bb+k}')
                    J(f'v_and_b32 v{bb+k}, v{vBM+4*st+k}, v{bb+k}')
                pend += [(8, bb, st), (0, bb+4, st)]
            else:
                pend.append((j, bb, st))
        while mq: J(mq.pop(0))
        while nq: J(nq.pop(0))
        if j == 1: vread(3, vslot[3]); vread(4, vslot[4])
        elif j in (2, 3, 4): vread(j + 3, vslot[j + 3])
    while pend: pv(*pend.pop(0))
    while events: events.pop(0)[1]()
    I(f's_lshl_b32 s{s_t2}, s{s_T}, 15')
    I(f's_lshl_b32 s{s_t3}, s{s_c}, 11')
    I(f's_add_u32 s{s_t2}, s{s_t2}, s{s_t3}')
    I(f's_add_u32 s{s_t2}, s{s_t2}, {WS_O}')
    while vq: vq.pop(0)()
    late_issue()
    I(f'v_cmp_eq_u32 vcc, 0, v{vHi}')
    I(f'v_mov_b32 v{vM}, v{O+12}')
    I(f'v_mov_b32 v{vM2}, v{O+12}')
    I(f'v_permlane32_swap_b32 v{vM}, v{vM2}')
    I(f'v_rcp_f32 v{vM2}, v{vM2}')
    E.wait(vm='g')
    I(f'v_mul_f32 v{vM2}, v{vM2}, v{vG}')
    I(f'v_cndmask_b32 v{vM}, 0, v{vM2}, vcc')
    for st in range(2):
        for r in range(8*st, 8*st+8): I(f'v_mul_f32 v{O+r}, v{O+r}, v{vM if r >= 12 else vM2}')
        for k in range(4): I(f'v_cvt_pk_bf16_f32 v{qf+4*st+k}, v{O+8*st+2*k}, v{O+8*st+2*k+1}')
        I(f'buffer_store_dwordx4 {vr(qf+4*st,4)}, v{vL16}, {sr(sWS,4)}, s{s_t2} offen offset:{st*1024} sc1', tag='ost')
    stamp(7)
    def o_flag():
        E.wait(vm='ost')
        I(f's_lshl_b32 s{s_t0}, s{s_T}, 4')
        I(f's_add_u32 s{s_t0}, s{s_t0}, s{s_c}')
        I(f's_lshl_b32 s{s_t0}, s{s_t0}, 2')
        I(f's_add_u32 s{s_t0}, s{s_t0}, {WS_FO}')
        flag_store(s_t0)
        stamp(8)
    I(f's_cmp_eq_u32 s{s_ns}, 7')
    I('s_cbranch_scc1 L_idle')
    snap_idle = E.snapshot()
    for r_, n_ in ((KF, 72), (Sx, 48), (Mx, 16), (NM, 16), (O, 16), (one4, 4), (vBM, 8)): V.put(r_, n_)

    ac3 = V.get(64, 4); bf = V.get(24, 4); rb = V.get(48, 4)
    def breads(k):
        _, va, off = w3_slot(k >> 1)
        return [f'ds_read_b64_tr_b16 {vr(bf+8*(k%3)+4*a+2*h,2)}, v{va+a} offset:{off+(k&1)*2048+h*1024}' for a in range(2) for h in range(2)]
    assert E.cnt.get('w3_13', 0) == 2
    sys.stderr.write(f'P2 est cycles {E.t - t0}, h pieces left {len(vq)}\n')
    hq = list(vq); vq[:] = []
    wq = []
    for k in (0, 1):
        E.wait(vm=f'w3_{k}')
        for r in breads(k): I(r, tag=f'b{k}')
    for k in range(36):
        if k == 28:
            for e in range(4):
                for r in range(16): I(f'v_mul_f32 v{ac3+16*e+r}, v{ac3+16*e+r}, v{vOm+(e&1)}')
        while E.cnt.get(f'h{k}', 0) < 2: hq.pop(0)()
        E.wait(vm=f'h{k}', lgkm=f'b{k}')
        if k & 1 and (k >> 1) + 7 < 18: wq.extend(w3_pieces((k >> 1) + 7))
        rd = []
        for m in range(4):
            a, b = m >> 1, m & 1
            d = vr(ac3+32*a+16*b, 16)
            I(f'{MF} {d}, {vr(bf+8*(k%3)+4*a,4)}, {areg(k,b)}, {"0" if k == 0 else d}')
            if m == 1 and k + 2 < 36:
                while E.cnt.get(f'w3_{k+2}', 0) < 2: wq.pop(0)()
                E.wait(vm=f'w3_{k+2}'); rd = breads(k + 2)
            for _ in range(2):
                if rd: I(rd.pop(0), tag=f'b{k+2}')
            q = (wq if (m & 1) == 0 else hq)
            if not q: q = hq if q is wq else wq
            if q: q.pop(0)()
        if k == P['lchk_k']:
            poll_check(vPl1, vPh, WS_F, 'pl', sNeedL)
            stamp(18)
            for p in range(4, 14): hq.extend(h_pieces(p))
        if k == P['oflag_k']: o_flag()
        if k == P['opoll_k']: poll_issue(vPl0, vPo, WS_FO, 'po')
        if k == P['ochk_k']:
            assert not hq
            stamp(10)
            poll_check(vPl0, vPo, WS_FO, 'po', sNeedO)
            stamp(11)
            for p in range(14, 18): hq.extend(h_pieces(p))
        if k == 8: I('s_barrier')
    stamp(12)
    vRw = V.get(3); vRr = V.get()
    for e in range(1, 4):
        I(f's_xor_b32 s{s_t0}, s{s_w}, {e}')
        I(f's_mul_i32 s{s_t0}, s{s_t0}, 12288')
        I(f's_add_u32 s{s_t0}, s{s_t0}, {RED + (e-1)*4096}')
        I(f'v_add_u32 v{vRw+e-1}, s{s_t0}, v{vL16}')
    I(f's_mul_i32 s{s_t0}, s{s_w}, 12288')
    I(f's_add_u32 s{s_t0}, s{s_t0}, {RED}')
    I(f'v_add_u32 v{vRr}, s{s_t0}, v{vL16}')
    for e in (1, 2, 3):
        for q in range(4):
            I(f'ds_write_b128 v{vRw+e-1}, {vr(ac3+16*e+4*q,4)} offset:{q*1024}', tag='red')
    I(f'v_mul_u32_u24 v{vT0}, 896, v{vL31}')
    I(f'v_lshl_add_u32 v{vT0}, v{vHi}, 4, v{vT0}')
    I(f's_mul_i32 s{s_t0}, s{s_hb0}, {32*896}')
    I(f's_lshl_b32 s{s_t1}, s{s_ns}, 7')
    I(f's_add_u32 s{s_t0}, s{s_t0}, s{s_t1}')
    I(f's_lshr_b32 s{s_t1}, s{s_w}, 1')
    I(f's_lshl_b32 s{s_t1}, s{s_t1}, 6')
    I(f's_add_u32 s{s_t0}, s{s_t0}, s{s_t1}')
    E.wait(lgkm='all')
    I('s_barrier')
    for q in range(4):
        for e in range(3):
            I(f'ds_read_b128 {vr(rb+16*e+4*q,4)}, v{vRr} offset:{e*4096+q*1024}', tag=f'rr{q}')
    for q in range(4):
        E.wait(lgkm=f'rr{q}')
        for r in range(4*q, 4*q+4):
            I(f'v_add_f32 v{ac3+r}, v{ac3+r}, v{rb+r}')
            I(f'v_add_f32 v{rb+16+r}, v{rb+16+r}, v{rb+32+r}')
        for r in range(4*q, 4*q+4):
            I(f'v_add_f32 v{ac3+r}, v{ac3+r}, v{rb+16+r}')
        for k in range(2*q, 2*q+2): I(f'v_cvt_pk_bf16_f32 v{bf+k}, v{ac3+2*k}, v{ac3+2*k+1}')
        if q & 1:
            p = q >> 1
            I(f'v_permlane32_swap_b32 v{bf+4*p}, v{bf+4*p+2}')
            I(f'v_permlane32_swap_b32 v{bf+4*p+1}, v{bf+4*p+3}')
            I(f'buffer_store_dwordx4 {vr(bf+4*p,4)}, v{vT0}, {sr(sOUT,4)}, s{s_t0} offen offset:{32*p}', tag='out')
    E.label('L_fin')
    if stamps:
        I('s_waitcnt vmcnt(0)')
        stamp(13)
    if stamps and 'diag' in P:
        k = P['diag']
        I(f'v_readlane_b32 s{s_t0}, v{vStamp}, 15')
        if k == 99:
            I(f's_getreg_b32 s{s_t1}, hwreg(HW_REG_XCC_ID, 0, 4)')
            I(f's_sub_u32 s{s_t1}, s{s_t1}, s2')
            I(f's_and_b32 s{s_t1}, s{s_t1}, 7')
            I(f's_mul_i32 s{s_t1}, s{s_t1}, 500')
        else:
            I(f'v_readlane_b32 s{s_t1}, v{vStamp}, {k}')
            I('s_nop 4')
            I(f's_cmp_eq_u32 s{s_t1}, 0')
            I(f's_cselect_b32 s{s_t1}, s{s_t0}, s{s_t1}')
            I(f's_sub_u32 s{s_t1}, s{s_t1}, s{s_t0}')
            I(f's_lshl_b32 s{s_t1}, s{s_t1}, 2')
        I(f's_add_u32 s{s_t1}, s{s_t1}, 6000')
        E.label('L_pad')
        I(f's_memrealtime {sr(sTM,2)}')
        I('s_waitcnt lgkmcnt(0)')
        I(f's_sub_u32 s{s_t2}, s{sTM}, s{s_t0}')
        I(f's_cmp_lt_u32 s{s_t2}, s{s_t1}')
        I('s_cbranch_scc1 L_pad')
    elif stamps:
        I(f's_lshl_b32 s{s_t0}, s2, 2')
        I(f's_add_u32 s{s_t0}, s{s_t0}, s{s_w}')
        I(f's_lshl_b32 s{s_t0}, s{s_t0}, 8')
        I(f's_add_u32 s{s_t0}, s{s_t0}, {WS_STAMP}')
        I(f'v_lshlrev_b32 v{vT0}, 2, v{vLane}')
        I(f'buffer_store_dword v{vStamp}, v{vT0}, {sr(sWS,4)}, s{s_t0} offen')
        I(f's_load_dwordx2 {sr(sW2,2)}, s[0:1], 64')
        E.wait(lgkm='all')
        I(f's_and_b32 s{sW2+1}, s{sW2+1}, 0xffff')
        I(f's_mov_b32 s{sW2+2}, 64')
        I(f'v_readlane_b32 s{s_t0}, v{vStamp}, 16')
        I(f'v_not_b32 v{vT1}, v{vStamp}')
        I(f'v_cmp_eq_u32 vcc, 15, v{vLane}')
        I(f'v_writelane_b32 v{vStamp}, s{s_t0}, 14')
        I(f'v_cndmask_b32 v{vStamp}, v{vStamp}, v{vT1}, vcc')
        E.raw(f'    buffer_atomic_umax v{vStamp}, v{vT0}, {sr(sW2,4)}, 0 offen')
    E.label('L_end')
    I('s_endpgm')
    E.label('L_idle')
    E.restore(snap_idle)
    o_flag()
    I(f's_xor_b32 s{s_t0}, s2, 224')
    I(f's_or_b32 s{s_t0}, s{s_t0}, s{s_w}')
    I(f's_cmp_lg_u32 s{s_t0}, 0')
    I('s_cbranch_scc1 L_fin')
    I(f's_mov_b32 s{s_cnt}, 0')
    I(f's_movk_i32 s{s_t0}, {WS_FO}')
    E.label('L_epoch')
    for q in range(4):
        I(f'buffer_load_dwordx4 {vr(ac3+4*q,4)}, v{vL16}, {sr(sWS,4)}, s{s_t0} offen offset:{q*1024} sc1')
    I('s_waitcnt vmcnt(0)')
    for r in range(16): I(f'v_xor_b32 v{ac3+r}, v{ac3+r}, v{vTag}')
    for r in range(1, 16, 2):
        I(f'v_or3_b32 v{ac3}, v{ac3}, v{ac3+r}, v{ac3+min(r+1,15)}')
    I(f'v_cmp_ne_u32 vcc, 0, v{ac3}')
    I(f's_add_u32 s{s_cnt}, s{s_cnt}, 1')
    I(f's_and_b64 {sr(sP,2)}, vcc, vcc')
    I('s_cbranch_scc0 L_epoch_ok')
    I('s_sleep 8')
    I(f's_cmp_lt_u32 s{s_cnt}, {SPIN_MAX}')
    I('s_cbranch_scc1 L_epoch')
    E.label('L_epoch_ok')
    I(f's_mov_b32 s{s_t0}, 0')
    flag_store(s_t0)
    I('s_branch L_fin')

    head = open('cdna_kernels/' + NAME + '.s.ref').read().split('; Override')[0]
    out = head + f'; @launch grid=(256,1,1) block=(256,1,1) lds={LDS_BYTES}\n'
    out += f'''.amdgcn_target "amdgcn-amd-amdhsa--gfx950"
.text
.globl {NAME}_kernel
.p2align 8
.type {NAME}_kernel,@function
'''
    out += E.text()
    out += f'''.fill 12288, 4, 0xBF810000
.section .rodata,"a"
.p2align 6
.amdhsa_kernel {NAME}_kernel
  .amdhsa_next_free_vgpr 512
  .amdhsa_next_free_sgpr 102
  .amdhsa_accum_offset 256
  .amdhsa_group_segment_fixed_size 0
  .amdhsa_kernarg_size 80
  .amdhsa_user_sgpr_count 2
  .amdhsa_user_sgpr_kernarg_segment_ptr 1
  .amdhsa_system_sgpr_workgroup_id_x 1
.end_amdhsa_kernel
'''
    sys.stderr.write(f'instrs {E.nins} vgpr_hi {V.hi} sgpr_hi {S.hi}\n')
    return out

if __name__ == '__main__':
    st = 'stamps' in sys.argv[2:]
    kw = {a.split('=')[0]: int(a.split('=')[1]) for a in sys.argv[2:] if '=' in a}
    txt = generate(st, **kw)
    open(sys.argv[1], 'w').write(txt)
```
